```python
import torch

def _softmax(x, axis=-1):
    return torch.softmax(x, dim=axis)
def _gelu(x):
    return torch.nn.functional.gelu(x, approximate="tanh")
def _silu(x):
    return torch.nn.functional.silu(x)
def _sigmoid(x):
    return torch.sigmoid(x)
def _layernorm(x, axis=-1, eps=1e-5):
    m = x.mean(dim=axis, keepdim=True)
    v = x.var(dim=axis, keepdim=True, unbiased=False)
    return (x - m) / torch.sqrt(v + eps)
def _scatter_add(tgt, idx, src, axis=0):
    return tgt.clone().index_add_(axis, idx, src)
def _segment_sum(src, seg, n):
    out = torch.zeros((n,) + src.shape[1:], dtype=src.dtype)
    return out.index_add_(0, seg, src)
def _pad(x, pw):
    flat = tuple(v for pair in reversed(pw) for v in pair)
    return torch.nn.functional.pad(x, flat)

kernel_name = 'standalone__cheap_equivariant_egnn__graph'

def setup_inputs():

    _w = (lambda a: (lambda t: t.to(torch.bfloat16) if t.is_floating_point() else t)(torch.as_tensor(a)))
    N, deg, D, De = 10000, 16, 128, max(4, 1)
    E = N * deg
    return {
        "h": _w((lambda *s: torch.randn(*s, dtype=torch.bfloat16) * 0.2)(N, D)),
        "pos": _w((lambda *s: torch.randn(*s, dtype=torch.bfloat16) * 0.8)(N, 3)),
        "e_attr": _w((lambda *s: torch.randn(*s, dtype=torch.bfloat16) * 0.8)(E, De)),
        "src": _w((lambda lo, hi, *s: torch.randint(lo, hi, s))(0, N, E).to(torch.int64)),
        "dst": _w((lambda lo, hi, *s: torch.randint(lo, hi, s))(0, N, E).to(torch.int64)),
        "w_e": _w(0.1 * (lambda *s: torch.randn(*s, dtype=torch.bfloat16) * 0.8)(2 * D + 1 + De, D)),
        "w_x": _w(0.1 * (lambda *s: torch.randn(*s, dtype=torch.bfloat16) * 0.2)(D, 1)),
        "w_h": _w(0.1 * (lambda *s: torch.randn(*s, dtype=torch.bfloat16) * 0.2)(2 * D, D)),
    }

def reference(h, pos, e_attr, src, dst, w_e, w_x, w_h):
    N, D = h.shape[0], h.shape[1]
    diff = pos[dst] - pos[src]
    dist2 = torch.sum(diff * diff, axis=-1, keepdims=True)
    e_in = torch.concatenate([h[dst], h[src], dist2, e_attr], axis=-1)
    m_ij = _silu(e_in @ w_e)
    coord_scale = m_ij @ w_x
    pos_new = pos + _segment_sum(diff * coord_scale, dst, N)
    m_i = _segment_sum(m_ij, dst, N)
    h_new = h + _silu(torch.concatenate([h, m_i], axis=-1) @ w_h)
    return h_new, pos_new
```

```python
import re

TRANS = ("v_exp_f32", "v_log_f32", "v_rcp_f32", "v_rsq_f32", "v_sqrt_f32", "v_sin_f32", "v_cos_f32", "v_rcp_iflag_f32")

def _regs(tok):
    tok = tok.strip()
    tok = tok.lstrip('-').strip('|')
    m = re.fullmatch(r'([vsa])(\d+)', tok)
    if m: return [(m.group(1), int(m.group(2)))]
    m = re.fullmatch(r'([vsa])\[(\d+):(\d+)\]', tok)
    if m: return [(m.group(1), i) for i in range(int(m.group(2)), int(m.group(3)) + 1)]
    if tok == 'vcc': return [('s', 106), ('s', 107)]
    if tok == 'vcc_lo': return [('s', 106)]
    if tok == 'vcc_hi': return [('s', 107)]
    if tok == 'exec': return [('s', 126), ('s', 127)]
    if tok == 'exec_lo': return [('s', 126)]
    if tok == 'exec_hi': return [('s', 127)]
    if tok == 'm0': return [('s', 124)]
    return []

def split_ops(s):
    out = []; depth = 0; cur = ''
    for ch in s:
        if ch == '[': depth += 1
        if ch == ']': depth -= 1
        if ch == ',' and depth == 0:
            out.append(cur.strip()); cur = ''
        else: cur += ch
    if cur.strip(): out.append(cur.strip())
    return out

class Asm:
    def __init__(self):
        self.lines = []
        self.ev = []
        self.maxv = 0
        self.maxs = 0
        self.nlabel = 0
    def raw(self, t): self.lines.append(t)
    def comment(self, t): self.lines.append("    ; " + t)
    def newlabel(self, base="L"):
        self.nlabel += 1
        return f".{base}_{self.nlabel}"
    def label(self, l):
        self.lines.append(l + ":")
    def _age(self, n):
        for e in self.ev: e['age'] += n
        self.ev = [e for e in self.ev if e['age'] < 24]
    def nop(self, n):
        while n > 0:
            k = min(n, 8)
            self.lines.append(f"    s_nop {k-1}")
            self._age(k); n -= k
    def settle(self, extra_credit=0):
        need = 0
        for e in self.ev:
            need = max(need, e['maxneed'] - e['age'] - extra_credit)
        if need > 0: self.nop(need)
    def __call__(self, text, nosettle=False):
        for t in text.strip().split('\n'):
            t = t.split(';')[0].strip()
            if not t: continue
            if t.endswith(':'):
                self.label(t[:-1]); continue
            self.ins(t, nosettle)
    def ins(self, t, nosettle=False):
        parts = t.split(None, 1)
        op = parts[0]
        rest = parts[1] if len(parts) > 1 else ''
        ops = split_ops(rest)
        mods = ''
        if ops:
            sp = ops[-1].split(None, 1)
            ops[-1] = sp[0]
            if len(sp) > 1: mods = sp[1]
        R = [_regs(o) for o in ops]
        for r in R:
            for k, n in r:
                if k == 'v': self.maxv = max(self.maxv, n + 1)
                if k == 's' and n < 102: self.maxs = max(self.maxs, n + 1)
        kind = None; dst = []; src = []
        opb = re.sub(r'_(e32|e64|sdwa|dpp)$', '', op)
        if op == 's_nop':
            self.lines.append("    " + t); self._age(int(ops[0], 0) + 1); return
        if op.startswith('v_mfma'):
            kind = 'mfma'; dst = R[0]; A = R[1]; B = R[2]; C = R[3]; src = A + B + C
            passes = 8 if '32x32' in op else 4
        elif op.startswith('v_cmp'):
            kind = 'valu'; dst = R[0]; src = sum(R[1:], [])
        elif op.startswith('v_readfirstlane') or op.startswith('v_readlane'):
            kind = 'valu'; dst = R[0]; src = sum(R[1:], [])
        elif op.startswith('v_'):
            kind = 'valu'; dst = R[0]; src = sum(R[1:], [])
            if opb in ('v_fmac_f32', 'v_dot2c_f32_bf16', 'v_pk_fmac_f16', 'v_writelane_b32') or 'permlane' in op or 'UNUSED_PRESERVE' in mods: src = src + dst
            if 'permlane' in op and 'swap' in op: dst = R[0] + R[1]
            if opb == 'v_cndmask_b32' and len(ops) == 3: src = src + [('s', 106), ('s', 107)]
            if '_co_' in op: raise Exception("avoid carry ops: " + t)
        elif op.startswith('ds_'):
            kind = 'ds'
            if 'read' in op or '_rtn' in op or 'bpermute' in op or 'permute' in op or 'swizzle' in op:
                dst = R[0]; src = sum(R[1:], [])
            else: src = sum(R, [])
        elif op.startswith('buffer_') or op.startswith('global_'):
            kind = 'vmem'
            islds = re.search(r'\blds\b', mods) is not None
            if 'load' in op and not islds: dst = R[0]; src = sum(R[1:], [])
            elif 'atomic' in op and re.search(r'\bsc0\b', mods): dst = R[0]; src = sum(R, [])
            else: src = sum(R, [])
            if islds: src = src + [('s', 124)]
        elif op.startswith('s_'):
            kind = 'salu'
            if op.startswith(('s_cmp', 's_waitcnt', 's_barrier', 's_branch', 's_cbranch', 's_endpgm', 's_setprio', 's_sleep', 's_bitcmp')):
                src = sum(R, [])
            else:
                dst = R[0] if R else []; src = sum(R[1:], [])
                if 'saveexec' in op: dst = dst + [('s', 126), ('s', 127)]
        else:
            raise Exception("unknown op " + t)
        if op.startswith(('s_branch', 's_cbranch', 's_setpc', 's_swappc')) and not nosettle:
            self.settle(extra_credit=1)
        sset = set(src); dset = set(dst)
        need = 0
        isdpp = 'dpp' in op or re.search(r'\b(row_|quad_perm|wave_)', mods) is not None
        for e in self.ev:
            k = e['kind']; rg = e['regs']; req = 0
            if k == 'valu_v':
                if kind == 'mfma' and rg & sset: req = 2
                if kind == 'valu':
                    if (op.startswith('v_readfirstlane') or op.startswith('v_readlane')) and rg & sset: req = max(req, 1)
                    if (isdpp or 'permlane' in op) and rg & sset: req = max(req, 2)
                if e.get('trans') and rg & sset and not (opb in TRANS): req = max(req, 1)
                if e.get('opsel') and rg & (sset | dset): req = max(req, 1)
                if e.get('dot') and rg & (sset | dset):
                    if not (opb == e['dot'] and not (rg & set(sum(R[1:3], [])))): req = max(req, 3)
            elif k == 'valu_s':
                if kind == 'valu' and rg & sset: req = 4 if ('readlane' in op or 'writelane' in op) else 2
                if kind == 'mfma' and rg & sset: req = 2
                if kind == 'vmem' and rg & sset: req = 5
            elif k == 'mfma_d':
                p = e['passes']; big = 12 if p == 8 else 8; mid = 10 if p == 8 else 6
                if kind == 'mfma':
                    if rg & set(A + B): req = big
                    if rg & set(C) or rg & dset:
                        exact = (set(C) == rg and passes == p and dset == rg)
                        if not exact: req = max(req, mid)
                elif rg & (sset | dset): req = big
            elif k == 'mfma_c':
                if kind == 'valu' and rg & dset: req = 7 if e['passes'] == 8 else 3
                if kind in ('ds', 'vmem') and rg & dset: req = 7 if e['passes'] == 8 else 3
            elif k == 'm0':
                if kind == 'vmem' and ('s', 124) in sset: req = 1
            elif k == 'wstore':
                if rg & dset: req = 2
            need = max(need, req - e['age'])
        if need > 0: self.nop(need)
        self.lines.append("    " + t)
        self._age(1)
        if kind == 'valu':
            vd = {r for r in dset if r[0] == 'v'}; sd = {r for r in dset if r[0] == 's'}
            if vd:
                e = dict(kind='valu_v', regs=vd, age=0, maxneed=2)
                if opb in TRANS: e['trans'] = True
                if 'sdwa' in op or 'op_sel' in mods or 'dst_sel' in mods: e['opsel'] = True
                if op.startswith('v_dot'): e['dot'] = opb; e['maxneed'] = 3
                self.ev.append(e)
            if sd: self.ev.append(dict(kind='valu_s', regs=sd, age=0, maxneed=5))
        elif kind == 'mfma':
            self.ev.append(dict(kind='mfma_d', regs=dset, age=0, passes=passes, maxneed=12 if passes == 8 else 8))
            if C: self.ev.append(dict(kind='mfma_c', regs=set(C), age=0, passes=passes, maxneed=7 if passes == 8 else 3))
        elif kind == 'salu':
            if ('s', 124) in dset: self.ev.append(dict(kind='m0', regs={('s', 124)}, age=0, maxneed=1))
        elif kind == 'vmem' and 'store' in op and ('x4' in op or 'x3' in op):
            self.ev.append(dict(kind='wstore', regs=set(R[0]), age=0, maxneed=2))
    def text(self): return "\n".join(self.lines) + "\n"

def v(n, c=1): return f"v{n}" if c == 1 else f"v[{n}:{n+c-1}]"
def s(n, c=1): return f"s{n}" if c == 1 else f"s[{n}:{n+c-1}]"

def kdesc(name, nv, ns):
    nv = (nv + 7) // 8 * 8
    return f""".p2align 6
.amdhsa_kernel {name}
  .amdhsa_next_free_vgpr {nv}
  .amdhsa_next_free_sgpr {max(ns, 16)}
  .amdhsa_accum_offset {nv}
  .amdhsa_group_segment_fixed_size 0
  .amdhsa_kernarg_size 88
  .amdhsa_user_sgpr_count 2
  .amdhsa_user_sgpr_kernarg_segment_ptr 1
  .amdhsa_system_sgpr_workgroup_id_x 1
.end_amdhsa_kernel
"""
```

```python
from asmfw import *

WS_BT   = 4096
WS_POS4 = 0x280000
WS_W1F  = 0x2A0000
WS_WH1F = 0x2A8000
WS_WH2F = 0x2B0000
WS_WSM  = 0x2B8000
WS_WXK  = 0x2B8800
WS_OVFK = 0x2C0000
WS_OVFE = 0x2C8000
WS_SLOT = 0x300000
WS_SIZE = 0x800000
NLOG2E = 0xBFB8AA3B

K1_NBIN = 64
K1_NGEMM = 157
K1_GEMM0 = 64
K1_WP0 = K1_GEMM0 + K1_NGEMM
K1_WSM = K1_WP0 + 12
K1_GRID = K1_WSM + 1
K1_LDS = 67584

def srd(a, d, lo, hi, size):
    a(f"s_mov_b32 s{d}, s{lo}")
    a(f"s_mov_b32 s{d+1}, s{hi}")
    a(f"s_mov_b32 s{d+2}, {size}")
    a(f"s_mov_b32 s{d+3}, 0x00020000")

def gen_k1(a, ST=""):
    H, POS, EA, SRC, DST, WE, WX, WH, WS = 4, 6, 8, 10, 12, 14, 16, 18, 20
    a("s_load_dwordx16 s[4:19], s[0:1], 0")
    a("s_load_dwordx2 s[20:21], s[0:1], 80")
    a(f"s_cmp_lt_u32 s2, {K1_NBIN}")
    a("s_cbranch_scc1 .K1_BIN")
    a(f"s_cmp_lt_u32 s2, {K1_WP0}")
    a("s_cbranch_scc1 .K1_GEMM")
    a(f"s_cmp_lt_u32 s2, {K1_WSM}")
    a("s_cbranch_scc1 .K1_WPREP")
    a(f"s_cmp_eq_u32 s2, {K1_WSM}")
    a("s_cbranch_scc1 .K1_WSM")
    a("s_endpgm")

    a.label(".K1_BIN")
    a("v_lshlrev_b32 v2, 2, v0")
    a("v_lshlrev_b32 v3, 3, v0")
    a("s_mul_i32 s40, s2, 10000")
    a("s_add_u32 s41, s40, 4096")
    a("s_add_u32 s42, s40, 8192")
    a("s_mul_i32 s43, s2, 20000")
    for j in range(1, 5): a(f"s_add_u32 s{43+j}, s43, {4096*j}")
    a("s_waitcnt lgkmcnt(0)")
    srd(a, 24, DST, DST+1, 640000)
    srd(a, 28, SRC, SRC+1, 640000)
    srd(a, 32, EA, EA+1, 1280000)
    srd(a, 36, WS, WS+1, WS_SIZE)
    DV, SV, EV, Q, CA, RK, SBZ, KEY = 10, 15, 20, 30, 35, 40, 45, 50
    for j in range(5):
        a(f"buffer_load_dword v{DV+j}, v2, s[24:27], s{40+j//2} offen offset:{2048*(j&1)}")
    for j in range(5):
        a(f"buffer_load_dword v{SV+j}, v2, s[28:31], s{40+j//2} offen offset:{2048*(j&1)}")
    for j in range(5):
        a(f"buffer_load_dwordx2 v[{EV+2*j}:{EV+2*j+1}], v3, s[32:35], s{43+j} offen")
    a("v_lshlrev_b32 v1, 4, v0")
    for r in range(4, 8): a(f"v_mov_b32 v{r}, -1")
    a("v_mov_b32 v8, 0")
    a("v_mov_b32 v9, 1")
    for j in range(8): a(f"ds_write_b128 v1, v[4:7] offset:{2048+8192*j}")
    a("ds_write_b32 v2, v8")
    a("s_movk_i32 s50, 452")
    a("v_cmp_gt_u32 s[48:49], s50, v0")
    a("s_waitcnt lgkmcnt(0)")
    a("s_barrier")
    a("s_waitcnt vmcnt(10)")
    for j in range(5):
        a(f"v_mul_u32_u24 v{Q+j}, 13108, v{DV+j}")
        a(f"v_lshrrev_b32 v{Q+j}, 16, v{Q+j}")
        a(f"v_and_b32 v{CA+j}, 0x7fc, v{Q+j}")
        if j == 4: a("s_mov_b64 exec, s[48:49]")
        a(f"ds_add_rtn_u32 v{RK+j}, v{CA+j}, v9")
        if j == 4: a("s_mov_b64 exec, -1")
    a("s_waitcnt vmcnt(5)")
    for j in range(5):
        a(f"v_mul_u32_u24 v55, 5, v{Q+j}")
        a(f"v_sub_u32 v55, v{DV+j}, v55")
        a(f"v_lshl_or_b32 v{KEY+j}, v55, 14, v{SV+j}")
        a(f"v_lshl_or_b32 v{KEY+j}, v{Q+j}, 17, v{KEY+j}")
        a(f"v_lshlrev_b32 v56, 1, v{Q+j}")
        a(f"v_and_b32 v56, 0x70, v56")
        a(f"v_lshl_or_b32 v{SBZ+j}, v{CA+j}, 5, v56")
    a("s_waitcnt vmcnt(0) lgkmcnt(0)")
    OK = 52
    OV = 62
    for j in range(5):
        a(f"v_cmp_gt_u32 s[{OK+2*j}:{OK+2*j+1}], 10, v{RK+j}")
        a(f"v_lshlrev_b32 v55, 2, v{RK+j}")
        a(f"v_xor_b32 v55, v55, v{SBZ+j}")
        a(f"v_lshl_add_u32 v56, v{RK+j}, 3, 48")
        a(f"v_xor_b32 v56, v56, v{SBZ+j}")
        if j == 4:
            a(f"s_andn2_b64 s[{OV+2*j}:{OV+2*j+1}], s[48:49], s[{OK+2*j}:{OK+2*j+1}]")
            a(f"s_and_b64 exec, s[48:49], s[{OK+2*j}:{OK+2*j+1}]")
        else:
            a(f"s_not_b64 s[{OV+2*j}:{OV+2*j+1}], s[{OK+2*j}:{OK+2*j+1}]")
            a(f"s_mov_b64 exec, s[{OK+2*j}:{OK+2*j+1}]")
        a(f"ds_write_b32 v55, v{KEY+j} offset:2048")
        a(f"ds_write_b64 v56, v[{EV+2*j}:{EV+2*j+1}] offset:2048")
        a("s_mov_b64 exec, -1")
    a(f"s_or_b64 s[72:73], s[{OV}:{OV+1}], s[{OV+2}:{OV+3}]")
    a(f"s_or_b64 s[74:75], s[{OV+4}:{OV+5}], s[{OV+6}:{OV+7}]")
    a(f"s_or_b64 s[72:73], s[72:73], s[{OV+8}:{OV+9}]")
    a(f"s_or_b64 s[72:73], s[72:73], s[74:75]")
    a("s_cbranch_scc0 .K1_BIN_NOOVF")
    OA = 57
    for j in range(5):
        a(f"v_lshrrev_b32 v{OA+j}, 8, v{Q+j}")
        a(f"v_lshlrev_b32 v{OA+j}, 2, v{OA+j}")
        a(f"s_mov_b64 exec, s[{OV+2*j}:{OV+2*j+1}]")
        a(f"ds_add_rtn_u32 v{RK+j}, v{OA+j}, v9 offset:2016")
        a("s_mov_b64 exec, -1")
    a("s_waitcnt lgkmcnt(0)")
    for j in range(5):
        a(f"v_cmp_gt_u32 vcc, 16, v{RK+j}")
        a(f"v_lshlrev_b32 v55, 2, v{RK+j}")
        a(f"v_lshl_add_u32 v55, v{OA+j}, 4, v55")
        a(f"v_lshlrev_b32 v56, 1, v55")
        a(f"v_add_u32 v55, 66048, v55")
        a(f"v_add_u32 v56, 66560, v56")
        a(f"v_xor_b32 v62, 40, v{SBZ+j}")
        a(f"s_and_b64 exec, s[{OV+2*j}:{OV+2*j+1}], vcc")
        a(f"ds_write_b32 v55, v{KEY+j}")
        a(f"ds_write_b64 v56, v[{EV+2*j}:{EV+2*j+1}]")
        a(f"s_andn2_b64 exec, s[{OV+2*j}:{OV+2*j+1}], vcc")
        a(f"ds_write_b32 v62, v8 offset:2048")
        a("s_mov_b64 exec, -1")
    a.label(".K1_BIN_NOOVF")
    a("v_lshrrev_b32 v4, 3, v0")
    a("v_and_b32 v5, 7, v0")
    a("v_lshrrev_b32 v6, 1, v4")
    a("v_and_b32 v6, 7, v6")
    a("v_xor_b32 v6, v6, v5")
    a("v_lshlrev_b32 v6, 4, v6")
    a("v_lshl_add_u32 v6, v4, 7, v6")
    a("v_lshlrev_b32 v7, 4, v5")
    a("v_lshl_add_u32 v7, v4, 13, v7")
    a("s_lshl_b32 s40, s2, 7")
    a(f"s_add_u32 s40, s40, {WS_SLOT}")
    for j in range(1, 8): a(f"s_add_u32 s{40+j}, s40, {524288*j}")
    a("s_movk_i32 s50, 416")
    a("v_cmp_gt_u32 s[48:49], s50, v0")
    a("s_waitcnt lgkmcnt(0)")
    a("s_barrier")
    for j in range(8): a(f"ds_read_b128 v[{10+4*j}:{13+4*j}], v6 offset:{2048+8192*j}")
    a("v_lshrrev_b32 v8, 6, v0")
    a("v_readfirstlane_b32 s51, v8")
    for j in range(8):
        a(f"s_waitcnt lgkmcnt({7-j})")
        if j == 7: a("s_mov_b64 exec, s[48:49]")
        a(f"buffer_store_dwordx4 v[{10+4*j}:{13+4*j}], v7, s[36:39], s{40+j} offen{ST}")
        if j == 7: a("s_mov_b64 exec, -1")
    a("s_cmp_eq_u32 s51, 7")
    a("s_cbranch_scc1 .K1_BIN_OK")
    a("s_cmp_eq_u32 s51, 6")
    a("s_cbranch_scc1 .K1_BIN_OE")
    a("s_endpgm")
    a.label(".K1_BIN_OK")
    a("v_and_b32 v4, 63, v0")
    a("v_lshlrev_b32 v5, 4, v4")
    a("v_add_u32 v5, 66048, v5")
    a("ds_read_b128 v[44:47], v5")
    a("v_lshrrev_b32 v6, 2, v4")
    a("v_and_b32 v7, 3, v4")
    a("v_lshlrev_b32 v7, 4, v7")
    a("v_lshl_add_u32 v7, v6, 12, v7")
    a("s_lshl_b32 s40, s2, 6")
    a(f"s_add_u32 s40, s40, {WS_OVFK}")
    a("s_mov_b32 exec_hi, 0")
    a("s_waitcnt lgkmcnt(0)")
    a(f"buffer_store_dwordx4 v[44:47], v7, s[36:39], s40 offen{ST}")
    a("s_endpgm")
    a.label(".K1_BIN_OE")
    a("v_and_b32 v4, 63, v0")
    a("v_lshlrev_b32 v5, 4, v4")
    a("v_add_u32 v5, 66560, v5")
    a("ds_read_b128 v[44:47], v5")
    a("v_lshrrev_b32 v6, 3, v4")
    a("v_and_b32 v7, 7, v4")
    a("v_lshlrev_b32 v7, 4, v7")
    a("v_lshl_add_u32 v7, v6, 13, v7")
    a("s_lshl_b32 s40, s2, 7")
    a(f"s_add_u32 s40, s40, {WS_OVFE}")
    a("s_waitcnt lgkmcnt(0)")
    a(f"buffer_store_dwordx4 v[44:47], v7, s[36:39], s40 offen{ST}")
    a("s_endpgm")

    a.label(".K1_GEMM")
    a(f"s_sub_u32 s3, s2, {K1_GEMM0}")
    a("s_lshl_b32 s40, s3, 14")
    a("v_lshrrev_b32 v1, 6, v0")
    a("v_and_b32 v2, 63, v0")
    a("v_readfirstlane_b32 s41, v1")
    a("v_lshrrev_b32 v3, 4, v2")
    a("v_and_b32 v4, 15, v2")
    a("v_lshl_add_u32 v5, v1, 3, v3")
    a("v_and_b32 v6, 15, v5")
    a("v_xor_b32 v6, v6, v4")
    a("v_lshlrev_b32 v6, 4, v6")
    a("v_lshl_add_u32 v6, v5, 8, v6")
    a("v_xor_b32 v7, 64, v6")
    a("v_lshl_add_u32 v8, v1, 4, v3")
    a("v_lshlrev_b32 v9, 1, v3")
    a("v_xor_b32 v9, v9, v4")
    a("v_lshlrev_b32 v9, 4, v9")
    a("v_lshl_add_u32 v9, v8, 8, v9")
    a("v_xor_b32 v10, 128, v9")
    a("s_lshl_b32 s42, s41, 11")
    a("s_lshl_b32 s43, s41, 12")
    a("s_add_u32 s43, s43, 16384")
    a("s_waitcnt lgkmcnt(0)")
    srd(a, 24, H, H+1, 2560000)
    srd(a, 28, WE, WE+1, 66816)
    srd(a, 32, POS, POS+1, 60000)
    srd(a, 36, WS, WS+1, WS_SIZE)
    a("s_mov_b32 s44, 32768")
    a("s_mov_b32 m0, s43")
    for j in range(4):
        a(f"buffer_load_dwordx4 v{9 if j < 2 else 10}, s[28:31], s44 offen offset:{1024*j} lds")
    a("s_mov_b32 m0, s42")
    a("buffer_load_dwordx4 v6, s[24:27], s40 offen lds")
    a("buffer_load_dwordx4 v7, s[24:27], s40 offen offset:1024 lds")
    a("s_cmp_lg_u32 s41, 0")
    a("s_cbranch_scc1 .K1_G_NOPOS")
    a("s_lshl_b32 s45, s3, 6")
    a("v_add_u32 v11, s45, v2")
    a("v_mul_u32_u24 v12, 6, v11")
    a("buffer_load_ushort v14, v12, s[32:35], 0 offen")
    a("buffer_load_ushort v16, v12, s[32:35], 0 offen offset:2")
    a("buffer_load_ushort v15, v12, s[32:35], 0 offen offset:4")
    a("v_lshlrev_b32 v13, 3, v11")
    a(f"s_mov_b32 s46, {WS_POS4}")
    a("s_waitcnt vmcnt(0)")
    a("v_lshl_or_b32 v14, v16, 16, v14")
    a(f"buffer_store_dwordx2 v[14:15], v13, s[36:39], s46 offen{ST}")
    a.label(".K1_G_NOPOS")
    a("v_and_b32 v11, 3, v1")
    a("v_lshrrev_b32 v12, 2, v1")
    a("v_lshl_add_u32 v13, v11, 4, v4")
    a("v_xor_b32 v14, v3, v4")
    a("v_lshlrev_b32 v14, 4, v14")
    a("v_lshl_add_u32 v14, v13, 8, v14")
    for ks in range(1, 4): a(f"v_xor_b32 v{14+ks}, {64*ks}, v14")
    a("v_lshrrev_b32 v18, 2, v4")
    a("v_and_b32 v19, 1, v3")
    a("v_lshl_or_b32 v19, v19, 2, v18")
    a("v_lshlrev_b32 v20, 2, v12")
    a("v_xor_b32 v19, v19, v20")
    a("v_lshlrev_b32 v19, 5, v19")
    a("v_and_b32 v20, 3, v4")
    a("v_lshl_add_u32 v19, v20, 3, v19")
    a("v_lshl_add_u32 v18, v3, 3, v18")
    a("v_lshl_add_u32 v19, v18, 8, v19")
    for cb in range(1, 4): a(f"v_xor_b32 v{19+cb}, {32*cb}, v19")
    a("v_lshlrev_b32 v23, 2, v3")
    a("v_lshl_add_u32 v23, v11, 4, v23")
    a("v_lshlrev_b32 v23, 8, v23")
    a("v_lshl_add_u32 v23, v12, 7, v23")
    a("v_lshl_add_u32 v23, v4, 3, v23")
    a(f"s_add_u32 s45, s40, {WS_BT}")
    a(f"s_mov_b32 s46, {NLOG2E}")
    a("s_waitcnt vmcnt(0)")
    a("s_barrier")
    AF = 24
    BF = 40
    D = 104
    for ks in range(4): a(f"ds_read_b128 v[{AF+4*ks}:{AF+4*ks+3}], v{14+ks}")
    for ks in range(4):
        for cb in range(4):
            b = BF + 16*ks + 4*cb
            for hf in range(2):
                a(f"ds_read_b64_tr_b16 v[{b+2*hf}:{b+2*hf+1}], v{19+cb} offset:{16384 + ks*8192 + hf*1024}")
    for ks in range(4):
        for cb in range(4):
            n_after = (3-ks)*8 + (3-cb)*2
            a(f"s_waitcnt lgkmcnt({min(n_after,15)})")
            b = BF + 16*ks + 4*cb
            c = "0" if ks == 0 else f"v[{D+4*cb}:{D+4*cb+3}]"
            a(f"v_mfma_f32_16x16x32_bf16 v[{D+4*cb}:{D+4*cb+3}], v[{AF+4*ks}:{AF+4*ks+3}], v[{b}:{b+3}], {c}")
    for cb in range(4):
        for r in range(4): a(f"v_mul_f32 v{D+4*cb+r}, s46, v{D+4*cb+r}")
    for r in range(4):
        a(f"v_cvt_pk_bf16_f32 v{40+2*r}, v{D+r}, v{D+4+r}")
        a(f"v_cvt_pk_bf16_f32 v{41+2*r}, v{D+8+r}, v{D+12+r}")
        a(f"buffer_store_dwordx2 v[{40+2*r}:{41+2*r}], v23, s[36:39], s45 offen offset:{256*r}{ST}")
    a("s_endpgm")

    a.label(".K1_WPREP")
    a(f"s_sub_u32 s3, s2, {K1_WP0}")
    a("s_and_b32 s40, s3, 3")
    a("s_lshr_b32 s41, s3, 2")
    a("s_lshl_b32 s40, s40, 9")
    a("v_add_u32 v1, s40, v0")
    a("v_lshrrev_b32 v2, 8, v1")
    a("v_bfe_u32 v3, v1, 6, 2")
    a("v_bfe_u32 v4, v1, 4, 2")
    a("v_and_b32 v5, 15, v1")
    a("v_lshl_add_u32 v6, v2, 4, v5")
    a("v_lshlrev_b32 v7, 2, v3")
    a("v_add_u32 v7, v7, v4")
    a("v_lshlrev_b32 v7, 11, v7")
    a("v_lshlrev_b32 v16, 4, v1")
    a("s_waitcnt lgkmcnt(0)")
    srd(a, 28, WE, WE+1, 66816)
    srd(a, 32, WH, WH+1, 65536)
    srd(a, 36, WS, WS+1, WS_SIZE)
    a("s_cmp_eq_u32 s41, 1")
    a("s_cbranch_scc1 .K1_WP1")
    a("s_cmp_eq_u32 s41, 2")
    a("s_cbranch_scc1 .K1_WP2")
    def ld8(srdn, addr, offs, soffs=None):
        for t in range(8):
            so = "0" if soffs is None else f"s{soffs+t}"
            a(f"buffer_load_ushort v{20+t}, v{addr}, s[{srdn}:{srdn+3}], {so} offen offset:{offs[t]}")
    def st(off):
        a(f"s_mov_b32 s42, {off}")
        a("s_waitcnt vmcnt(0)")
        for t in range(4): a(f"v_lshl_or_b32 v{10+t}, v{21+2*t}, 16, v{20+2*t}")
        a(f"buffer_store_dwordx4 v[10:13], v16, s[36:39], s42 offen{ST}")
        a("s_endpgm")
    a("v_and_b32 v8, 64, v6")
    a("v_and_b32 v9, 3, v6")
    a("v_lshl_add_u32 v8, v9, 4, v8")
    a("v_bfe_u32 v9, v6, 2, 4")
    a("v_add_u32 v8, v8, v9")
    a("v_lshl_add_u32 v8, v8, 1, v7")
    ld8(28, 8, [256*t for t in range(8)])
    st(WS_W1F)
    a.label(".K1_WP1")
    a("v_lshl_add_u32 v8, v6, 1, v7")
    ld8(32, 8, [256*t for t in range(8)])
    st(WS_WH1F)
    a.label(".K1_WP2")
    a("v_lshrrev_b32 v8, 1, v3")
    a("v_lshlrev_b32 v8, 6, v8")
    a("v_and_b32 v9, 1, v3")
    a("v_lshl_add_u32 v8, v9, 3, v8")
    a("v_and_b32 v9, 1, v4")
    a("v_lshl_add_u32 v8, v9, 2, v8")
    a("v_lshrrev_b32 v9, 1, v4")
    a("v_add_u32 v8, v8, v9")
    a("v_lshlrev_b32 v8, 8, v8")
    a("v_lshl_add_u32 v8, v6, 1, v8")
    for t in range(8): a(f"s_mov_b32 s{44+t}, {32768 + 4096*(t&3)}")
    ld8(32, 8, [512*(t>>2) for t in range(8)], soffs=44)
    st(WS_WH2F)

    a.label(".K1_WSM")
    a("v_lshrrev_b32 v1, 7, v0")
    a("v_readfirstlane_b32 s3, v1")
    a("v_and_b32 v6, 127, v0")
    a("s_waitcnt lgkmcnt(0)")
    srd(a, 28, WE, WE+1, 66816)
    srd(a, 32, WX, WX+1, 256)
    srd(a, 36, WS, WS+1, WS_SIZE)
    a("s_cmp_eq_u32 s3, 1")
    a("s_cbranch_scc1 .K1_WXK")
    a("s_cmp_lg_u32 s3, 0")
    a("s_cbranch_scc1 .K1_END")
    a("v_and_b32 v8, 64, v6")
    a("v_and_b32 v9, 3, v6")
    a("v_lshl_add_u32 v8, v9, 4, v8")
    a("v_bfe_u32 v9, v6, 2, 4")
    a("v_add_u32 v8, v8, v9")
    a("v_lshlrev_b32 v8, 1, v8")
    a("s_mov_b32 s40, 65536")
    for t in range(5): a(f"buffer_load_ushort v{10+t}, v8, s[28:31], s40 offen offset:{256*t}")
    a(f"s_mov_b32 s41, {NLOG2E}")
    a(f"s_mov_b32 s42, {WS_WSM}")
    a("v_lshlrev_b32 v16, 4, v6")
    a("s_waitcnt vmcnt(0)")
    for t in range(5):
        a(f"v_lshlrev_b32 v{10+t}, 16, v{10+t}")
        a(f"v_mul_f32 v{10+t}, s41, v{10+t}")
    a("v_cvt_pk_bf16_f32 v20, v11, v12")
    a("v_cvt_pk_bf16_f32 v21, v13, v14")
    a("v_cvt_pk_bf16_f32 v22, v10, v10")
    a("v_lshlrev_b32 v17, 16, v22")
    a("v_sub_f32 v17, v10, v17")
    a("v_cvt_pk_bf16_f32 v22, v10, v17")
    a("v_mov_b32 v23, 0")
    a(f"buffer_store_dwordx4 v[20:23], v16, s[36:39], s42 offen{ST}")
    a("s_endpgm")
    a.label(".K1_WXK")
    a("v_and_b32 v8, 64, v6")
    a("v_and_b32 v9, 3, v6")
    a("v_lshl_add_u32 v8, v9, 4, v8")
    a("v_bfe_u32 v9, v6, 5, 1")
    a("v_lshl_add_u32 v8, v9, 3, v8")
    a("v_bfe_u32 v9, v6, 2, 2")
    a("v_lshl_add_u32 v8, v9, 1, v8")
    a("v_bfe_u32 v9, v6, 4, 1")
    a("v_add_u32 v8, v8, v9")
    a("v_lshlrev_b32 v8, 1, v8")
    a("buffer_load_ushort v10, v8, s[32:35], 0 offen")
    a(f"s_mov_b32 s42, {WS_WXK}")
    a("v_lshlrev_b32 v16, 1, v6")
    a("s_waitcnt vmcnt(0)")
    a(f"buffer_store_short v10, v16, s[36:39], s42 offen{ST}")
    a.label(".K1_END")
    a("s_endpgm")
```

```python
from asmfw import *
from k1 import *

K2_GRID = 500
L_CNT  = 0
L_POS  = 64
L_X    = 1024
L_S    = 17408
L_ZEND = 37888
L_WXK  = 37888
L_SRC  = 38144
L_ATL  = 40192
L_RING = 48384
K2_LDS = 81152
PADSRC = 0x40000000
NLN2 = 0xBF317218

ACC0, ACC1, T0, T1, E, XS = 0, 16, 32, 48, 64, 80
SEL0, SEL1, ONE, VO, H1P, BX0, BX1 = 88, 92, 96, 100, 104, 108, 112
aX, aS, aB, aSRC, cofE, cofO, vOUT, vPOWN, LANE = 116, 117, 118, 122, 123, 124, 125, 126, 127

sH, sPOS, sEA, sSRC, sDST = 4, 6, 8, 10, 12
sOUT, sWS = 20, 22
R_WS, R_H, R_BT, R_OUT, R_P, R_A, R_B = 24, 28, 32, 36, 40, 44, 48
sW, sHF, sG, sCNT, sREM, sLAST, sSLOW = 56, 57, 58, 59, 60, 61, 62
sDMA = 64
sRING = 68
sT = 70
sCM = 80
sVM = 88
sBATCH, sOVER = 96, 97
sPEND = 98
sB = 2

def mfma32(a, d, x, y, c):
    cs = "0" if c is None else f"v[{c}:{c+15}]"
    a(f"v_mfma_f32_32x32x16_bf16 v[{d}:{d+15}], v[{x}:{x+3}], v[{y}:{y+3}], {cs}")
def mfma16(a, d, x, y, c):
    cs = "0" if c is None else f"v[{c}:{c+3}]"
    a(f"v_mfma_f32_16x16x32_bf16 v[{d}:{d+3}], v[{x}:{x+3}], v[{y}:{y+3}], {cs}")

def zero_fill(a, tid, t):
    a(f"v_lshlrev_b32 v{t}, 4, v{tid}")
    for r in range(4): a(f"v_mov_b32 v{t+2+r}, 0")
    for j in range(4): a(f"ds_write_b128 v{t}, v[{t+2}:{t+5}] offset:{8192*j}")
    a(f"s_movk_i32 s{sT}, 320")
    a(f"v_cmp_gt_u32 vcc, s{sT}, v{tid}")
    a("s_mov_b64 exec, vcc")
    a(f"ds_write_b128 v{t}, v[{t+2}:{t+5}] offset:32768")
    a("s_mov_b64 exec, -1")
    a(f"v_lshlrev_b32 v{t+1}, 2, v{tid}")
    a(f"v_mov_b32 v{t+6}, {PADSRC}")
    a(f"ds_write_b32 v{t+1}, v{t+6} offset:{L_SRC}")

def cand_rank_issue(a, c, vm, t, one):
    KEY, RK = c+6, c+7
    a(f"v_lshrrev_b32 v{t}, 15, v{KEY}")
    a(f"v_and_b32 v{t}, 12, v{t}")
    a(f"s_mov_b64 exec, s[{vm}:{vm+1}]")
    a(f"ds_add_rtn_u32 v{RK}, v{t}, v{one} offset:{L_CNT}")
    a("s_mov_b64 exec, -1")

def cand_commit(a, c, vm, cm, t, skip=None, extra=None):
    PS, PD, KEY, RK = c+2, c+4, c+6, c+7
    a(f"s_movk_i32 s{sT}, 128")
    a(f"v_cmp_gt_u32 vcc, s{sT}, v{RK}")
    a(f"s_and_b64 s[{cm}:{cm+1}], vcc, s[{vm}:{vm+1}]")
    if skip: a(f"s_cbranch_scc0 {skip}")
    a(f"v_and_b32 v{t}, 0x3fff, v{KEY}")
    a(f"v_bfe_u32 v{t+1}, v{KEY}, 17, 2")
    a(f"v_bfe_u32 v{t+2}, v{KEY}, 14, 3")
    a(f"v_lshlrev_b32 v{t+3}, 3, v{t}")
    a(f"v_mad_u32_u24 v{t+2}, v{t+1}, 5, v{t+2}")
    a(f"v_lshlrev_b32 v{t+2}, 3, v{t+2}")
    a(f"s_mov_b64 exec, s[{cm}:{cm+1}]")
    a(f"buffer_load_dwordx2 v[{PS}:{PS+1}], v{t+3}, s[{R_WS}:{R_WS+3}], s{sT+1} offen")
    a(f"buffer_load_dwordx2 v[{PD}:{PD+1}], v{t+2}, s[{R_WS}:{R_WS+3}], s{sT+2} offen")
    if extra: extra()
    a(f"v_and_b32 v{t+4}, 7, v{RK}")
    a(f"v_bfe_u32 v{t+5}, v{RK}, 3, 2")
    a(f"v_lshl_add_u32 v{t+4}, v{t+4}, 2, v{t+5}")
    a(f"v_and_b32 v{t+5}, 0x60, v{RK}")
    a(f"v_add_u32 v{t+4}, v{t+4}, v{t+5}")
    a(f"v_lshl_add_u32 v{t+4}, v{t+1}, 7, v{t+4}")
    a(f"v_lshlrev_b32 v{t+4}, 2, v{t+4}")
    a(f"v_lshlrev_b32 v{t}, 8, v{t}")
    a(f"ds_write_b32 v{t+4}, v{t} offset:{L_SRC}")
    a("s_mov_b64 exec, -1")
    if skip: a.label(skip)

def cand_build(a, c, cm, t, onebf, skip=None):
    EA, PS, PD, KEY, RK = c, c+2, c+4, c+6, c+7
    if skip:
        a(f"s_cmp_eq_u64 s[{cm}:{cm+1}], 0")
        a(f"s_cbranch_scc1 {skip}")
    M = "0xffff0000"
    a(f"v_lshlrev_b32 v{t}, 16, v{PS}")
    a(f"v_and_b32 v{t+1}, {M}, v{PS}")
    a(f"v_lshlrev_b32 v{t+2}, 16, v{PS+1}")
    a(f"v_lshlrev_b32 v{t+3}, 16, v{PD}")
    a(f"v_and_b32 v{t+4}, {M}, v{PD}")
    a(f"v_lshlrev_b32 v{t+5}, 16, v{PD+1}")
    for k in range(3): a(f"v_sub_f32 v{t+k}, v{t+3+k}, v{t+k}")
    a(f"v_cvt_pk_bf16_f32 v{PD}, v{t}, v{t+1}")
    a(f"v_cvt_pk_bf16_f32 v{PD+1}, v{t+2}, v{t+2}")
    a(f"v_bfe_u32 v{t+6}, v{KEY}, 17, 2")
    a(f"v_bfe_u32 v{t+7}, v{KEY}, 14, 3")
    a(f"v_lshlrev_b32 v{t}, 16, v{PD}")
    a(f"v_and_b32 v{t+1}, {M}, v{PD}")
    a(f"v_lshlrev_b32 v{t+2}, 16, v{PD+1}")
    for k in range(3): a(f"v_mul_f32 v{t+k}, v{t+k}, v{t+k}")
    a(f"v_cvt_pk_bf16_f32 v{t+3}, v{t}, v{t+1}")
    a(f"v_cvt_pk_bf16_f32 v{t+4}, v{t+2}, v{t+2}")
    a(f"v_lshrrev_b32 v{t+8}, 4, v{RK}")
    a(f"v_bfe_u32 v{t+9}, v{RK}, 2, 1")
    a(f"v_lshl_add_u32 v{t+8}, v{t+8}, 1, v{t+9}")
    a(f"v_lshl_add_u32 v{t+8}, v{t+6}, 4, v{t+8}")
    a(f"v_mad_u32_u24 v{t+8}, v{t+8}, 5, v{t+7}")
    a(f"v_bfe_u32 v{t+9}, v{RK}, 3, 1")
    a(f"v_and_b32 v{t+5}, 3, v{RK}")
    a(f"v_lshl_add_u32 v{t+9}, v{t+9}, 2, v{t+5}")
    a(f"v_lshl_add_u32 v{t+8}, v{t+8}, 5, v{t+9}")
    a(f"v_lshlrev_b32 v{t+8}, 1, v{t+8}")
    a(f"v_lshlrev_b32 v{t}, 16, v{t+3}")
    a(f"v_and_b32 v{t+1}, {M}, v{t+3}")
    a(f"v_lshlrev_b32 v{t+2}, 16, v{t+4}")
    a(f"v_add_f32 v{t}, v{t}, v{t+1}")
    a(f"v_add_f32 v{t}, v{t}, v{t+2}")
    a(f"v_cvt_pk_bf16_f32 v{PS}, v{t}, v{t}")
    a(f"v_and_b32 v{t+1}, 31, v{RK}")
    a(f"v_lshrrev_b32 v{t+2}, 5, v{RK}")
    a(f"v_lshlrev_b32 v{t+1}, 4, v{t+1}")
    a(f"v_lshl_add_u32 v{t+1}, v{t+2}, 10, v{t+1}")
    a(f"v_lshl_add_u32 v{t+1}, v{t+6}, 12, v{t+1}")
    a(f"v_lshl_add_u32 v{t+2}, v{t+7}, 1, v{t+1}")
    a(f"s_mov_b64 exec, s[{cm}:{cm+1}]")
    a(f"ds_write_b16 v{t+8}, v{onebf} offset:{L_S}")
    a(f"ds_write_b16 v{t+8}, v{PD} offset:{L_S+16}")
    a(f"ds_write_b16_d16_hi v{t+8}, v{PD} offset:{L_S+32}")
    a(f"ds_write_b16 v{t+8}, v{PD+1} offset:{L_S+48}")
    a(f"ds_write_b96 v{t+1}, v[{EA}:{EA+2}] offset:{L_X}")
    a(f"ds_write_b16 v{t+2}, v{onebf} offset:{L_X+512}")
    a("s_mov_b64 exec, -1")
    if skip: a.label(skip)

def issue_gather(a):
    for k in range(4): a(f"v_add_u32 v{VO+k}, v{VO+k}, v{cofO if k & 1 else cofE}")
    a(f"s_mov_b32 m0, s{sRING}")
    for k in range(4):
        a(f"buffer_load_dwordx4 v{VO+k}, s[{R_BT}:{R_BT+3}], s{sDMA+k} offen offset:{1024*k} lds")

def issue_final(a, t):
    a(f"v_lshlrev_b32 v{t}, 4, v{LANE}")
    a(f"s_lshl_b32 s{sT}, s{sW}, 12")
    a(f"s_add_u32 s{sT}, s{sT}, {WS_WH2F}")
    a(f"s_mov_b32 m0, s{sRING}")
    for k in range(4):
        a(f"buffer_load_dwordx4 v{t}, s[{R_WS}:{R_WS+3}], s{sT} offen offset:{1024*k} lds")
    a(f"s_mul_i32 s{sT}, s{sB}, 5120")
    a(f"s_lshl_b32 s{sT+1}, s{sW}, 5")
    a(f"s_add_u32 s{sT}, s{sT}, s{sT+1}")
    a(f"buffer_load_dwordx2 v[{VO}:{VO+1}], v{vOUT}, s[{R_H}:{R_H+3}], s{sT} offen")
    a(f"buffer_load_dwordx2 v[{VO+2}:{VO+3}], v{vOUT}, s[{R_H}:{R_H+3}], s{sT} offen offset:2560")
    a(f"v_lshlrev_b32 v{t+1}, 1, v{LANE}")
    a(f"s_mul_i32 s{sT+1}, s{sB}, 120")
    a(f"buffer_load_ushort v{vPOWN}, v{t+1}, s[{R_P}:{R_P+3}], s{sT+1} offen")

def unit(a, T, ACC, nq):
    n = 4 * nq
    for r in range(n): a(f"v_exp_f32 v{E+r}, v{T+r}")
    mfma32(a, E, ONE, ONE, E)
    for r in range(n): a(f"v_rcp_f32 v{E+r}, v{E+r}")
    for r in range(n): a(f"v_mul_f32 v{E+r}, v{E+r}, v{T+r}")
    for j in range(2 * nq): a(f"v_cvt_pk_bf16_f32 v{T+j}, v{E+2*j}, v{E+2*j+1}")
    if nq & 1:
        a(f"v_mov_b32 v{T+2*nq}, 0")
        a(f"v_mov_b32 v{T+2*nq+1}, 0")
    mfma32(a, ACC, T, XS+4, ACC)
    if nq > 2: mfma32(a, ACC, T+4, XS, ACC)

def read_counts(a, t):
    a(f"v_mov_b32 v{t+4}, 0")
    a(f"s_lshl_b32 s{sT}, s{sG}, 2")
    a(f"v_mov_b32 v{t+5}, s{sT}")
    a(f"ds_read_b128 v[{t}:{t+3}], v{t+4} offset:{L_CNT}")
    a(f"ds_read_b32 v{t+5}, v{t+5} offset:{L_CNT}")
    a(f"ds_read_b128 v[{VO}:{VO+3}], v{aSRC}")
    a("s_waitcnt lgkmcnt(1)")
    a(f"v_max3_u32 v{t}, v{t}, v{t+1}, v{t+2}")
    a(f"v_max_u32 v{t}, v{t}, v{t+3}")
    a(f"v_readfirstlane_b32 s{sCNT}, v{t+5}")
    a(f"v_readfirstlane_b32 s{sOVER}, v{t}")
    a(f"s_min_u32 s{sCNT}, s{sCNT}, 128")

def reset_addrs(a):
    t = XS
    a(f"v_and_b32 v{t}, 31, v{LANE}")
    a(f"v_lshrrev_b32 v{t+1}, 5, v{LANE}")
    a(f"v_lshlrev_b32 v{t}, 4, v{t}")
    a(f"s_lshl_b32 s{sT}, s{sG}, 12")
    a(f"s_add_u32 s{sT}, s{sT}, {L_X}")
    a(f"v_lshl_add_u32 v{aX}, v{t+1}, 9, v{t}")
    a(f"v_add_u32 v{aX}, s{sT}, v{aX}")
    a(f"s_mul_i32 s{sT}, s{sG}, 5120")
    a(f"s_add_u32 s{sT}, s{sT}, {L_S}")
    a(f"v_mul_u32_u24 v{aS}, 320, v{t+1}")
    a(f"v_add3_u32 v{aS}, v{aS}, v{t}, s{sT}")
    a(f"s_lshl_b32 s{sT}, s{sG}, 9")
    a(f"s_add_u32 s{sT}, s{sT}, {L_SRC}")
    a(f"v_lshrrev_b32 v{aSRC}, 3, v{LANE}")
    a(f"v_lshlrev_b32 v{aSRC}, 4, v{aSRC}")
    a(f"v_add_u32 v{aSRC}, s{sT}, v{aSRC}")

def gen_k2(a, **kw):
    a("s_load_dwordx16 s[4:19], s[0:1], 0")
    a("s_load_dwordx2 s[20:21], s[0:1], 64")
    a("s_load_dwordx2 s[22:23], s[0:1], 80")
    a(f"s_cmp_lt_u32 s2, {K2_GRID}")
    a("s_cbranch_scc1 .K2_GO")
    a("s_endpgm")
    a.label(".K2_GO")
    TID = 96
    a(f"v_mov_b32 v{TID}, v0")
    a(f"v_and_b32 v{LANE}, 63, v0")
    a("v_lshrrev_b32 v64, 6, v0")
    a(f"v_readfirstlane_b32 s{sW}, v64")
    a("v_lshrrev_b32 v65, 3, v0")
    a("v_and_b32 v66, 7, v0")
    a("v_lshlrev_b32 v65, 7, v65")
    a("v_lshl_add_u32 v67, v66, 2, v65")
    a("v_lshl_add_u32 v68, v66, 3, v65")
    a("v_lshlrev_b32 v69, 3, v0")
    a(f"s_lshr_b32 s{sHF}, s{sW}, 2")
    a(f"s_add_u32 s{sG}, s{sW}, s{sHF}")
    a(f"s_and_b32 s{sG}, s{sG}, 3")
    a(f"s_lshl_b32 s{sT}, s{sB}, 13")
    a(f"s_add_u32 s{sT}, s{sT}, {WS_SLOT}")
    a(f"s_lshr_b32 s{sT+1}, s{sB}, 6")
    a(f"s_lshl_b32 s{sT+3}, s{sT+1}, 13")
    a(f"s_add_u32 s{sT+3}, s{sT+3}, {WS_OVFE}")
    a(f"s_lshl_b32 s{sT+1}, s{sT+1}, 12")
    a(f"s_add_u32 s{sT+1}, s{sT+1}, {WS_OVFK}")
    a(f"v_lshrrev_b32 v70, 4, v{LANE}")
    a(f"s_and_b32 s{sT+2}, s{sW}, 1")
    a(f"s_lshl_b32 s{sT+2}, s{sT+2}, 2")
    a(f"v_add_u32 v71, s{sT+2}, v70")
    a(f"s_and_b32 s{sT+2}, s{sW}, 3")
    a(f"s_lshl_b32 s{sT+2}, s{sT+2}, 2")
    a(f"v_add_u32 v72, s{sT+2}, v70")
    a(f"v_and_b32 v73, 15, v{LANE}")
    a("v_xor_b32 v72, v72, v73")
    a("v_lshlrev_b32 v72, 4, v72")
    a("v_lshl_add_u32 v72, v71, 8, v72")
    a("v_cmp_gt_u32 vcc, 5, v71")
    a(f"v_mov_b32 v74, {PADSRC}")
    a("v_cndmask_b32 v72, v74, v72, vcc")
    a(f"s_lshr_b32 s{sT+2}, s{sW}, 1")
    a(f"s_mul_i32 s{sT+2}, s{sT+2}, 1280")
    a(f"s_mul_i32 s{sT+4}, s{sB}, 5120")
    a(f"s_add_u32 s{sT+2}, s{sT+2}, s{sT+4}")
    a(f"s_lshl_b32 s{sT+4}, s{sW}, 10")
    a(f"s_add_u32 s{sT+4}, s{sT+4}, {L_ATL}")
    a(f"v_lshlrev_b32 v75, 4, v{LANE}")
    a(f"s_lshl_b32 s{sT+5}, s{sW}, 12")
    a(f"s_add_u32 s{sT+6}, s{sT+5}, {WS_WH1F}")
    a(f"s_add_u32 s{sRING}, s{sT+5}, {L_RING}")
    a(f"s_add_u32 s{sT+5}, s{sT+5}, {WS_W1F}")
    a(f"v_and_b32 v76, 31, v{LANE}")
    a("v_lshlrev_b32 v76, 4, v76")
    a(f"s_lshl_b32 s{sT+7}, s{sHF}, 10")
    a(f"s_add_u32 s{sT+7}, s{sT+7}, {WS_WSM}")
    a("s_waitcnt lgkmcnt(0)")
    srd(a, R_WS, sWS, sWS+1, WS_SIZE)
    srd(a, R_H, sH, sH+1, 2560000)
    C0, C1, C2, C3 = 32, 40, 48, 56
    W = f"s[{R_WS}:{R_WS+3}]"
    a(f"buffer_load_dword v{C0+6}, v67, {W}, s{sT} offen")
    a(f"buffer_load_dword v{C1+6}, v67, {W}, s{sT} offen offset:32")
    a(f"buffer_load_dwordx2 v[78:79], v69, {W}, s{sT+1} offen")
    a(f"buffer_load_dwordx2 v[{C0}:{C0+1}], v68, {W}, s{sT} offen offset:48")
    a(f"buffer_load_dwordx2 v[{C1}:{C1+1}], v68, {W}, s{sT} offen offset:112")
    a(f"s_mov_b32 m0, s{sT+4}")
    a(f"buffer_load_dwordx4 v72, s[{R_H}:{R_H+3}], s{sT+2} offen lds")
    for k in range(4): a(f"buffer_load_dwordx4 v[{4*k}:{4*k+3}], v75, {W}, s{sT+5} offen offset:{1024*k}")
    a(f"buffer_load_dwordx4 v[{BX0}:{BX0+3}], v76, {W}, s{sT+7} offen")
    a(f"buffer_load_dwordx4 v[{BX1}:{BX1+3}], v76, {W}, s{sT+7} offen offset:512")
    for k in range(4): a(f"buffer_load_dwordx4 v[{16+4*k}:{19+4*k}], v75, {W}, s{sT+6} offen offset:{1024*k}")
    a(f"s_cmp_lg_u32 s{sW}, 0")
    a("s_cbranch_scc1 .K2_NOWX")
    a(f"s_mov_b32 m0, {L_WXK}")
    a(f"s_mov_b32 s{sT+4}, {WS_WXK}")
    a("s_mov_b64 exec, 0xffff")
    a(f"buffer_load_dwordx4 v75, {W}, s{sT+4} offen lds")
    a("s_mov_b64 exec, -1")
    a.label(".K2_NOWX")
    srd(a, R_BT, sWS, sWS+1, 4096 + 2560000)
    srd(a, R_OUT, sOUT, sOUT+1, 2620000)
    srd(a, R_P, sPOS, sPOS+1, 60000)
    zero_fill(a, TID, 80)
    reset_addrs(a)
    a(f"v_and_b32 v80, 31, v{LANE}")
    a(f"v_lshrrev_b32 v81, 5, v{LANE}")
    a("v_bfe_u32 v82, v80, 1, 3")
    a("v_xor_b32 v82, v82, v81")
    a("v_lshlrev_b32 v82, 4, v82")
    a("v_lshl_add_u32 v82, v80, 7, v82")
    a(f"v_add_u32 v{aB}, s{sRING}, v82")
    for k in range(1, 4): a(f"v_xor_b32 v{aB+k}, {32*k}, v{aB}")
    a(f"v_and_b32 v80, 7, v{LANE}")
    a(f"v_xor_b32 v80, v80, v70")
    a(f"v_lshlrev_b32 v{cofE}, 4, v80")
    a(f"v_xor_b32 v{cofO}, 64, v{cofE}")
    a(f"s_lshl_b32 s{sDMA}, s{sHF}, 7")
    a(f"s_add_u32 s{sDMA}, s{sDMA}, 4096")
    for k in range(1, 4): a(f"s_sub_u32 s{sDMA+k}, s{sDMA}, {1024*k}")
    a("v_lshrrev_b32 v80, 3, v73")
    a("v_and_b32 v81, 7, v73")
    a("v_mad_u32_u24 v80, v80, 5, v81")
    a("v_lshlrev_b32 v80, 8, v80")
    a(f"v_lshl_add_u32 v{vOUT}, v70, 3, v80")
    a(f"s_mov_b32 s{sT+1}, {WS_POS4}")
    a(f"s_mul_i32 s{sT+2}, s{sB}, 160")
    a(f"s_add_u32 s{sT+2}, s{sT+2}, {WS_POS4}")
    a("v_mov_b32 v77, 1")
    a("v_cmp_gt_u32 s[76:77], 2, v66")
    a("v_cmp_eq_u32 s[78:79], 2, v66")
    a(f"s_mov_b32 s{sLAST}, 1")
    a("s_waitcnt lgkmcnt(0)")
    a("s_barrier")
    a("s_waitcnt vmcnt(15)")
    a(f"v_cmp_ne_u32 s[{sVM}:{sVM+1}], -1, v{C0+6}")
    cand_rank_issue(a, C0, sVM, 80, 77)
    a("s_waitcnt vmcnt(13)")
    a(f"v_cmp_ne_u32 vcc, -1, v{C1+6}")
    a(f"v_mov_b32 v{C2+6}, v78")
    a(f"v_mov_b32 v{C3+6}, v79")
    a(f"s_and_b64 s[{sVM+2}:{sVM+3}], vcc, s[76:77]")
    a(f"s_and_b64 s[78:79], vcc, s[78:79]")
    a(f"v_lshrrev_b32 v81, 19, v78")
    a(f"v_lshrrev_b32 v82, 19, v79")
    a(f"v_cmp_eq_u32 s[{sVM+4}:{sVM+5}], s{sB}, v81")
    a(f"v_cmp_eq_u32 s[{sVM+6}:{sVM+7}], s{sB}, v82")
    cand_rank_issue(a, C1, sVM+2, 83, 77)
    cand_rank_issue(a, C2, sVM+4, 84, 77)
    cand_rank_issue(a, C3, sVM+6, 85, 77)
    a("v_mov_b32 v86, 0x10000")
    a("v_mov_b32 v87, 0")
    a("s_mov_b64 exec, s[78:79]")
    a(f"ds_add_u32 v87, v86 offset:{L_CNT}")
    a("s_mov_b64 exec, -1")
    a("s_waitcnt lgkmcnt(4)")
    cand_commit(a, C0, sVM, sCM, 80)
    a("s_waitcnt lgkmcnt(1)")
    cand_commit(a, C1, sVM+2, sCM+2, 86, skip=".K2_SK1")
    a("v_lshlrev_b32 v69, 1, v69")
    cand_commit(a, C2, sVM+4, sCM+4, 86, skip=".K2_SK2",
                extra=lambda: a(f"buffer_load_dwordx2 v[{C2}:{C2+1}], v69, {W}, s{sT+3} offen"))
    cand_commit(a, C3, sVM+6, sCM+6, 86, skip=".K2_SK3",
                extra=lambda: a(f"buffer_load_dwordx2 v[{C3}:{C3+1}], v69, {W}, s{sT+3} offen offset:8"))
    a("s_waitcnt vmcnt(12) lgkmcnt(0)")
    a("s_barrier")
    read_counts(a, 64)
    a(f"s_cmp_gt_u32 s{sOVER}, 128")
    a(f"s_cselect_b32 s{sSLOW}, 1, 0")
    a("s_cbranch_scc1 .K2_P_SLOW")
    a(f"s_cmp_eq_u32 s{sCNT}, 0")
    a("s_cbranch_scc1 .K2_P_FIN")
    a("s_waitcnt lgkmcnt(0)")
    issue_gather(a)
    a("s_branch .K2_P_GEMM")
    a.label(".K2_P_SLOW")
    a("s_waitcnt vmcnt(0) lgkmcnt(0)")
    a("s_branch .K2_P_GEMM")
    a.label(".K2_P_FIN")
    a("s_waitcnt lgkmcnt(0)")
    issue_final(a, 64)
    a.label(".K2_P_GEMM")
    a(f"v_and_b32 v96, 15, v{LANE}")
    a(f"v_lshrrev_b32 v97, 4, v{LANE}")
    a("v_xor_b32 v98, v96, v97")
    a("v_lshlrev_b32 v98, 4, v98")
    a("v_lshl_add_u32 v98, v96, 8, v98")
    for ks in range(1, 4): a(f"v_xor_b32 v{H1P+ks}, {64*ks}, v98")
    a(f"v_mov_b32 v{H1P}, v98")
    for rb in range(2):
        for ks in range(4):
            a(f"ds_read_b128 v[{64+16*rb+4*ks}:{67+16*rb+4*ks}], v{H1P+ks} offset:{L_ATL+4096*rb}")
    a(f"s_mov_b32 s{sT+5}, {NLOG2E}")
    a("s_waitcnt vmcnt(12) lgkmcnt(0)")
    a("s_barrier")
    DA = [H1P, 96]
    for rb in range(2):
        for ks in range(4): mfma16(a, DA[rb], 64+16*rb+4*ks, 4*ks, None if ks == 0 else DA[rb])
    a("s_waitcnt vmcnt(6)")
    for rb in range(2):
        for ks in range(4): mfma16(a, 4*rb, 16+4*ks, 64+16*rb+4*ks, None if ks == 0 else 4*rb)
    a(f"v_lshrrev_b32 v9, 5, v{LANE}")
    a(f"v_bfe_u32 v10, v{LANE}, 4, 1")
    a(f"v_and_b32 v11, 15, v{LANE}")
    a("v_lshlrev_b32 v8, 3, v10")
    a("v_lshl_add_u32 v8, v9, 11, v8")
    a("v_lshl_add_u32 v8, v11, 4, v8")
    a(f"s_lshl_b32 s{sT+4}, s{sW}, 8")
    a(f"v_add_u32 v8, s{sT+4}, v8")
    for rb in range(2):
        d = DA[rb]
        for r in range(4): a(f"v_mul_f32 v{d+r}, s{sT+5}, v{d+r}")
        a(f"v_cvt_pk_bf16_f32 v{d}, v{d}, v{d+1}")
        a(f"v_cvt_pk_bf16_f32 v{d+1}, v{d+2}, v{d+3}")
        a(f"ds_write_b64 v8, v[{d}:{d+1}] offset:{L_ATL+4096*rb}")
    a(f"v_and_b32 v9, 31, v{LANE}")
    a(f"s_lshl_b32 s{sT+4}, s{sG}, 11")
    a(f"s_lshl_b32 s{sT+6}, s{sHF}, 10")
    a(f"s_add_u32 s{sT+4}, s{sT+4}, s{sT+6}")
    a(f"v_lshl_add_u32 v9, v9, 4, s{sT+4}")
    a("s_waitcnt lgkmcnt(0)")
    a("s_barrier")
    a("s_mov_b32 exec_lo, 0")
    a(f"ds_read_b128 v[{BX0}:{BX0+3}], v9 offset:{L_ATL}")
    a(f"ds_read_b128 v[{BX1}:{BX1+3}], v9 offset:{L_ATL+512}")
    a("s_mov_b32 exec_lo, -1")
    for r in range(8): a(f"v_mul_f32 v{r}, s{sT+5}, v{r}")
    for j in range(4): a(f"v_cvt_pk_bf16_f32 v{H1P+j}, v{2*j}, v{2*j+1}")
    a(f"s_cmp_lg_u32 s{sSLOW}, 0")
    a("s_cbranch_scc1 .K2_P_CONST")
    a("v_mov_b32 v79, 0x3f80")
    a("s_waitcnt vmcnt(4)")
    cand_build(a, C0, sCM, 64, 79)
    cand_build(a, C1, sCM+2, 64, 79, skip=".K2_SB1")
    cand_build(a, C2, sCM+4, 64, 79, skip=".K2_SB2")
    cand_build(a, C3, sCM+6, 64, 79, skip=".K2_SB3")
    a.label(".K2_P_CONST")
    a(f"v_and_b32 v64, 31, v{LANE}")
    a(f"v_lshrrev_b32 v65, 5, v{LANE}")
    a("v_and_b32 v66, 1, v64")
    a("v_lshlrev_b32 v66, 4, v66")
    a("v_mov_b32 v67, 0x3f80")
    a("v_lshlrev_b32 v66, v66, v67")
    a("v_lshlrev_b32 v65, 3, v65")
    a("v_sub_u32 v64, v64, v65")
    a("v_lshrrev_b32 v64, 1, v64")
    for m in range(4):
        a(f"v_cmp_eq_u32 vcc, {m}, v64")
        a(f"v_cmp_eq_u32 s[{sT}:{sT+1}], {8+m}, v64")
        a(f"v_cndmask_b32 v{SEL0+m}, 0, v66, vcc")
        a(f"v_cndmask_b32 v{SEL1+m}, 0, v66, s[{sT}:{sT+1}]")
    for m in range(4): a(f"v_mov_b32 v{ONE+m}, 0x3e803e80")
    for r in range(32): a(f"v_mov_b32 v{r}, 0")
    a("s_waitcnt lgkmcnt(0)")
    a("s_barrier")
    a(f"s_cmp_lg_u32 s{sSLOW}, 0")
    a("s_cbranch_scc1 .K2_SLOW")

    a.label(".K2_MAIN")
    a(f"s_mov_b32 s{sREM}, s{sCNT}")
    a(f"s_cmp_eq_u32 s{sCNT}, 0")
    a("s_cbranch_scc1 .K2_DONE")
    a.label(".K2_LOOP")
    a("s_waitcnt vmcnt(0)")
    a(f"ds_read_b128 v[{XS}:{XS+3}], v{aX}")
    for k in range(4): a(f"ds_read_b128 v[{E+4*k}:{E+4*k+3}], v{aB+k}")
    a(f"ds_read_b128 v[{VO}:{VO+3}], v{aSRC} offset:128")
    a(f"ds_read_b128 v[{XS+4}:{XS+7}], v{aS}")
    a("s_waitcnt lgkmcnt(5)")
    mfma32(a, T0, XS, BX0, None)
    mfma32(a, T0, E, SEL0, T0)
    a("s_waitcnt lgkmcnt(4)")
    mfma32(a, T0, E+4, SEL1, T0)
    mfma32(a, T1, XS, BX1, None)
    a("s_waitcnt lgkmcnt(2)")
    mfma32(a, T1, E+8, SEL0, T1)
    mfma32(a, T1, E+12, SEL1, T1)
    a(f"ds_read_b128 v[{XS}:{XS+3}], v{aS} offset:640")
    a(f"s_cmp_le_u32 s{sREM}, 32")
    a("s_cbranch_scc1 .K2_LASTT", nosettle=True)
    a("s_waitcnt lgkmcnt(2)")
    issue_gather(a)
    a.label(".K2_Q4")
    a.nop(8)
    a("s_waitcnt lgkmcnt(0)")
    unit(a, T0, ACC0, 4)
    unit(a, T1, ACC1, 4)
    a(f"v_add_u32 v{aX}, 1024, v{aX}")
    a(f"v_add_u32 v{aS}, 1280, v{aS}")
    a(f"v_add_u32 v{aSRC}, 128, v{aSRC}")
    a(f"s_sub_i32 s{sREM}, s{sREM}, 32")
    a(f"s_cmp_gt_i32 s{sREM}, 0")
    a("s_cbranch_scc1 .K2_LOOP", nosettle=True)
    a("s_branch .K2_DONE", nosettle=True)
    a.label(".K2_LASTT")
    a("s_waitcnt lgkmcnt(0)")
    a(f"s_cmp_eq_u32 s{sLAST}, 0")
    a("s_cbranch_scc1 .K2_NOFIN", nosettle=True)
    issue_final(a, aB)
    a.label(".K2_NOFIN")
    a(f"s_cmp_gt_u32 s{sREM}, 24")
    a("s_cbranch_scc1 .K2_Q4", nosettle=True)
    a(f"s_cmp_gt_u32 s{sREM}, 16")
    a("s_cbranch_scc1 .K2_Q3", nosettle=True)
    a(f"s_cmp_gt_u32 s{sREM}, 8")
    a("s_cbranch_scc1 .K2_Q2", nosettle=True)
    for nq in (1, 2, 3):
        a.label(f".K2_Q{nq}")
        a.nop(8)
        unit(a, T0, ACC0, nq)
        unit(a, T1, ACC1, nq)
        if nq < 3: a("s_branch .K2_DONE", nosettle=True)
    a.label(".K2_DONE")
    a(f"s_cmp_eq_u32 s{sLAST}, 0")
    a("s_cbranch_scc1 .K2_SLOW_NEXT")

    a(f"v_lshrrev_b32 v{XS}, 5, v{LANE}")
    a(f"v_and_b32 v{XS+1}, 31, v{LANE}")
    a(f"s_lshl_b32 s{sT}, s{sHF}, 7")
    a(f"v_lshl_add_u32 v{XS+2}, v{XS}, 5, s{sT}")
    for u in range(2):
        for m in range(2):
            a(f"ds_read_b128 v[{T1+8*u+4*m}:{T1+8*u+4*m+3}], v{XS+2} offset:{L_WXK+64*u+16*m}")
    a(f"v_lshrrev_b32 v{XS+3}, 2, v{XS+1}")
    a(f"s_lshl_b32 s{sT}, s{sG}, 3")
    a(f"v_add_u32 v{XS+3}, s{sT}, v{XS+3}")
    a(f"v_and_b32 v{XS+4}, 15, v{XS+3}")
    a(f"s_lshl_b32 s{sT}, s{sHF}, 3")
    a(f"v_lshl_add_u32 v{XS+5}, v{XS}, 1, s{sT}")
    a(f"v_xor_b32 v{XS+4}, v{XS+4}, v{XS+5}")
    a(f"v_lshlrev_b32 v{XS+4}, 4, v{XS+4}")
    a(f"v_lshl_add_u32 v{XS+4}, v{XS+3}, 8, v{XS+4}")
    a(f"v_xor_b32 v{XS+5}, 16, v{XS+4}")
    a(f"v_xor_b32 v{XS+6}, 64, v{XS+4}")
    a(f"v_xor_b32 v{XS+7}, 80, v{XS+4}")
    a(f"v_and_b32 v{XS+3}, 3, v{XS+1}")
    a(f"v_cmp_gt_u32 vcc, 20, v{XS+1}")
    a(f"v_cmp_eq_u32 s[{sT+2}:{sT+3}], 0, v{XS+3}")
    a(f"s_lshl_b32 s{sT}, s{sG}, 7")
    a(f"v_lshl_add_u32 v{XS+1}, v{XS+1}, 2, s{sT}")
    a(f"s_andn2_b64 s[{sT+4}:{sT+5}], vcc, s[{sT+2}:{sT+3}]")
    a(f"s_and_b64 s[{sT+2}:{sT+3}], vcc, s[{sT+2}:{sT+3}]")
    a.nop(4)
    for j in range(16): a(f"v_cvt_pk_bf16_f32 v{T0+j}, v{2*j}, v{2*j+1}")
    a(f"s_mov_b64 exec, s[{sT+2}:{sT+3}]")
    for k in range(4): a(f"ds_write_b128 v{XS+4+k}, v[{T0+4*k}:{T0+4*k+3}] offset:{L_ATL}")
    a("s_mov_b64 exec, -1")
    a("v_mov_b32 v0, 0")
    a("v_mov_b32 v1, 0")
    a("s_waitcnt lgkmcnt(4)")
    for j in range(16): a(f"v_dot2_f32_bf16 v{j&1}, v{T0+j}, v{T1+j}, v{j&1}")
    a("v_add_f32 v0, v0, v1")
    a(f"s_mov_b64 exec, s[{sT+4}:{sT+5}]")
    a(f"ds_add_f32 v{XS+1}, v0 offset:{L_POS}")
    a("s_mov_b64 exec, -1")
    a(f"v_lshlrev_b32 v2, 4, v{LANE}")
    a(f"v_add_u32 v2, s{sRING}, v2")
    a(f"v_and_b32 v3, 15, v{LANE}")
    a(f"v_lshrrev_b32 v4, 4, v{LANE}")
    a("v_xor_b32 v4, v3, v4")
    a("v_lshlrev_b32 v4, 4, v4")
    a("v_lshl_add_u32 v4, v3, 8, v4")
    for ks in range(1, 4): a(f"v_xor_b32 v{4+ks}, {64*ks}, v4")
    for j in range(4):
        a(f"v_lshlrev_b32 v{XS+2*j}, 16, v{H1P+j}")
        a(f"v_and_b32 v{XS+2*j+1}, 0xffff0000, v{H1P+j}")
    a("v_and_b32 v3, 7, v3")
    a(f"v_cmp_gt_u32 s[{sT+2}:{sT+3}], 5, v3")
    a(f"s_mul_i32 s{sT}, s{sB}, 5120")
    a(f"s_lshl_b32 s{sT+1}, s{sW}, 5")
    a(f"s_add_u32 s{sT}, s{sT}, s{sT+1}")
    a(f"s_mov_b32 s{sT+1}, {NLN2}")
    a("s_waitcnt vmcnt(0)")
    for ks in range(4): a(f"ds_read_b128 v[{E+4*ks}:{E+4*ks+3}], v2 offset:{1024*ks}")
    a("s_waitcnt lgkmcnt(0)")
    a("s_barrier")
    for rb in range(2):
        for ks in range(4):
            a(f"ds_read_b128 v[{T0+16*rb+4*ks}:{T0+16*rb+4*ks+3}], v{4+ks} offset:{L_ATL+4096*rb}")
    for j in range(4):
        a(f"v_lshlrev_b32 v{8+2*j}, 16, v{VO+j}")
        a(f"v_and_b32 v{9+2*j}, 0xffff0000, v{VO+j}")
    for rb in range(2):
        for ks in range(4):
            a(f"s_waitcnt lgkmcnt({7-4*rb-ks})")
            mfma16(a, XS+4*rb, E+4*ks, T0+16*rb+4*ks, XS+4*rb)
    for rb in range(2):
        b = XS + 4*rb; e = 16 + 4*rb
        for r in range(4): a(f"v_exp_f32 v{e+r}, v{b+r}")
        for r in range(4): a(f"v_add_f32 v{e+r}, 1.0, v{e+r}")
        for r in range(4): a(f"v_rcp_f32 v{e+r}, v{e+r}")
        for r in range(4): a(f"v_mul_f32 v{e+r}, v{e+r}, v{b+r}")
        for r in range(4): a(f"v_fma_f32 v{e+r}, v{e+r}, s{sT+1}, v{8+4*rb+r}")
        a(f"v_cvt_pk_bf16_f32 v{e}, v{e}, v{e+1}")
        a(f"v_cvt_pk_bf16_f32 v{e+1}, v{e+2}, v{e+3}")
        a(f"s_mov_b64 exec, s[{sT+2}:{sT+3}]")
        a(f"buffer_store_dwordx2 v[{e}:{e+1}], v{vOUT}, s[{R_OUT}:{R_OUT+3}], s{sT} offen offset:{2560*rb}")
        a("s_mov_b64 exec, -1")
    a(f"s_cmp_eq_u32 s{sW}, 0")
    a("s_cbranch_scc1 .K2_POS")
    a("s_endpgm")
    a.label(".K2_POS")
    a(f"v_mul_u32_u24 v0, 43, v{LANE}")
    a("v_lshrrev_b32 v0, 7, v0")
    a("v_mul_u32_u24 v1, 3, v0")
    a(f"v_sub_u32 v1, v{LANE}, v1")
    a("v_mul_u32_u24 v2, 13, v0")
    a("v_lshrrev_b32 v2, 6, v2")
    a("v_mul_u32_u24 v3, 5, v2")
    a("v_sub_u32 v3, v0, v3")
    a("v_lshl_add_u32 v1, v3, 2, v1")
    a("v_lshl_add_u32 v1, v2, 5, v1")
    a("v_lshlrev_b32 v1, 2, v1")
    a(f"ds_read_b32 v1, v1 offset:{L_POS+4}")
    a(f"v_lshlrev_b32 v2, 16, v{vPOWN}")
    a(f"v_lshlrev_b32 v3, 1, v{LANE}")
    a(f"s_mul_i32 s{sT}, s{sB}, 120")
    a(f"s_add_u32 s{sT}, s{sT}, 2560000")
    a(f"v_cmp_gt_u32 vcc, 60, v{LANE}")
    a("s_waitcnt lgkmcnt(0)")
    a(f"v_fma_f32 v1, v1, s{sT+1}, v2")
    a("v_cvt_pk_bf16_f32 v1, v1, v1")
    a("s_mov_b64 exec, vcc")
    a(f"buffer_store_short v1, v3, s[{R_OUT}:{R_OUT+3}], s{sT} offen")
    a("s_endpgm")

    C = 32
    a.label(".K2_SLOW")
    srd(a, R_A, sDST, sDST+1, 640000)
    srd(a, R_B, sSRC, sSRC+1, 640000)
    srd(a, R_B+4, sEA, sEA+1, 1280000)
    a(f"s_mov_b32 s{sLAST}, 0")
    a(f"s_mov_b32 s{sBATCH}, 0")
    a(f"s_mov_b64 s[{sPEND}:{sPEND+1}], -1")
    a.label(".K2_SLOW_ZERO")
    a(f"s_lshl_b32 s{sT}, s{sW}, 6")
    a(f"v_add_u32 v48, s{sT}, v{LANE}")
    zero_fill(a, 48, 64)
    reset_addrs(a)
    a("s_waitcnt lgkmcnt(0)")
    a("s_barrier")
    a.label(".K2_SLOW_BATCH")
    a(f"s_lshl_b32 s{sT}, s{sW}, 6")
    a(f"s_add_u32 s{sT}, s{sT}, s{sBATCH}")
    a(f"v_add_u32 v48, s{sT}, v{LANE}")
    a("v_lshlrev_b32 v49, 2, v48")
    a("v_lshlrev_b32 v50, 3, v48")
    a(f"buffer_load_dword v51, v49, s[{R_A}:{R_A+3}], 0 offen")
    a(f"buffer_load_dword v52, v49, s[{R_B}:{R_B+3}], 0 offen")
    a(f"buffer_load_dwordx2 v[{C}:{C+1}], v50, s[{R_B+4}:{R_B+7}], 0 offen")
    a(f"s_mov_b32 s{sT+1}, 160000")
    a(f"v_cmp_gt_u32 s[{sVM}:{sVM+1}], s{sT+1}, v48")
    a("v_mov_b32 v77, 1")
    a("v_mov_b32 v79, 0x3f80")
    a(f"s_mov_b32 s{sT+1}, {WS_POS4}")
    a(f"s_mul_i32 s{sT+2}, s{sB}, 160")
    a(f"s_add_u32 s{sT+2}, s{sT+2}, {WS_POS4}")
    a("s_waitcnt vmcnt(0)")
    a("v_mul_u32_u24 v53, 13108, v51")
    a("v_lshrrev_b32 v53, 16, v53")
    a("v_mul_u32_u24 v54, 5, v53")
    a("v_sub_u32 v54, v51, v54")
    a(f"v_lshl_or_b32 v{C+6}, v54, 14, v52")
    a(f"v_lshl_or_b32 v{C+6}, v53, 17, v{C+6}")
    a("v_lshrrev_b32 v53, 2, v53")
    a(f"v_cmp_eq_u32 vcc, s{sB}, v53")
    a(f"s_and_b64 s[{sVM}:{sVM+1}], s[{sVM}:{sVM+1}], s[{sPEND}:{sPEND+1}]")
    a(f"s_and_b64 s[{sVM}:{sVM+1}], s[{sVM}:{sVM+1}], vcc")
    cand_rank_issue(a, C, sVM, 64, 77)
    a("s_waitcnt lgkmcnt(0)")
    cand_commit(a, C, sVM, sCM, 64)
    a(f"s_andn2_b64 s[{sPEND}:{sPEND+1}], s[{sVM}:{sVM+1}], s[{sCM}:{sCM+1}]")
    a("s_waitcnt vmcnt(0)")
    cand_build(a, C, sCM, 64, 79)
    a("s_waitcnt lgkmcnt(0)")
    a("s_barrier")
    read_counts(a, 64)
    a("s_waitcnt lgkmcnt(0)")
    a("s_barrier")
    a(f"s_cmp_eq_u32 s{sOVER}, 0")
    a("s_cbranch_scc1 .K2_SLOW_ADV")
    a(f"s_cmp_eq_u32 s{sCNT}, 0")
    a("s_cbranch_scc1 .K2_SLOW_NEXT")
    issue_gather(a)
    a("s_branch .K2_MAIN")
    a.label(".K2_SLOW_NEXT")
    a("s_barrier")
    a(f"s_cmp_gt_u32 s{sOVER}, 128")
    a("s_cbranch_scc1 .K2_SLOW_ZERO")
    a(f"s_add_u32 s{sBATCH}, s{sBATCH}, 512")
    a(f"s_mov_b64 s[{sPEND}:{sPEND+1}], -1")
    a(f"s_cmp_lt_u32 s{sBATCH}, 160000")
    a("s_cbranch_scc1 .K2_SLOW_ZERO")
    a("s_branch .K2_SLOW_FIN")
    a.label(".K2_SLOW_ADV")
    a(f"s_add_u32 s{sBATCH}, s{sBATCH}, 512")
    a(f"s_mov_b64 s[{sPEND}:{sPEND+1}], -1")
    a(f"s_cmp_lt_u32 s{sBATCH}, 160000")
    a("s_cbranch_scc1 .K2_SLOW_BATCH")
    a.label(".K2_SLOW_FIN")
    a(f"s_mov_b32 s{sLAST}, 1")
    a(f"s_mov_b32 s{sCNT}, 0")
    issue_final(a, 64)
    a("s_branch .K2_MAIN")
```

```python
import sys
sys.path.insert(0, 'gen')
from asmfw import *
import k1
HDR = open('standalone__cheap_equivariant_egnn__graph.s.ref').read().split('; Override launch')[0]
def kernel_text(name, fn):
    a = Asm(); fn(a)
    t = f".globl {name}\n.p2align 8\n.type {name},@function\n{name}:\n" + a.text()
    return t, a.maxv, a.maxs
def build(path, only_k1=False, **kw):
    t1, v1, s1 = kernel_text("egnn_prep_kernel", lambda a: k1.gen_k1(a, kw.get('ST', '')))
    hdr = HDR + f"; @launch kernel=egnn_prep_kernel grid=({k1.K1_GRID},1,1) block=(512,1,1) lds={k1.K1_LDS}\n"
    body = t1; desc = kdesc("egnn_prep_kernel", v1, s1)
    if not only_k1:
        import k2
        t2, v2, s2 = kernel_text("egnn_main_kernel", lambda a: k2.gen_k2(a, **kw))
        hdr += f"; @launch kernel=egnn_main_kernel grid=({k2.K2_GRID},1,1) block=(512,1,1) lds={k2.K2_LDS}\n"
        body += t2; desc += kdesc("egnn_main_kernel", v2, s2)
        print("k2 vgprs", v2, "sgprs", s2, file=sys.stderr)
    out = hdr + '.amdgcn_target "amdgcn-amd-amdhsa--gfx950"\n.text\n' + body + '.section .rodata,"a"\n' + desc
    open(path, 'w').write(out)
if __name__ == "__main__":
    build(sys.argv[1], only_k1=(len(sys.argv) > 2 and sys.argv[2] == 'k1'))
```

```python
from asmfw import *

WS_BT   = 4096
WS_POSF = 0x278000
WS_W1F  = 0x2A0000
WS_WH1F = 0x2A8000
WS_WH2F = 0x2B0000
WS_WSM  = 0x2B8000
WS_WXK  = 0x2B8800
WS_KEY  = 0x300000
WS_EAS  = 0x410000
WS_SIZE = 0x800000
NLOG2E = 0xBFB8AA3B

K1_NBIN = 64
K1_NGEMM = 157
K1_GEMM0 = 64
K1_WP0 = K1_GEMM0 + K1_NGEMM
K1_WSM = K1_WP0 + 12
K1_GRID = K1_WSM + 1
K1_LDS = 60672

def srd(a, d, lo, hi, size):
    a(f"s_mov_b32 s{d}, s{lo}")
    a(f"s_mov_b32 s{d+1}, s{hi}")
    a(f"s_mov_b32 s{d+2}, {size}")
    a(f"s_mov_b32 s{d+3}, 0x00020000")

def gen_k1(a, ST="", prof=False):
    if prof:
        orig = a.ins
        def ins(t, nosettle=False):
            if t == "s_endpgm" and a.prof_on:
                orig("s_waitcnt vmcnt(0)")
                orig("s_memrealtime s[92:93]")
                orig("s_waitcnt lgkmcnt(0)")
                orig("v_lshrrev_b32 v1, 6, v0")
                orig("v_lshlrev_b32 v1, 4, v1")
                orig("v_mov_b32 v2, s90")
                orig("v_mov_b32 v3, s94")
                orig("v_mov_b32 v4, s95")
                orig("v_mov_b32 v5, s92")
                orig("s_lshl_b32 s91, s2, 7")
                orig("s_add_u32 s91, s91, 0x780000")
                orig("s_mov_b64 exec, 1")
                orig("buffer_store_dwordx4 v[2:5], v1, s[36:39], s91 offen")
            orig(t, nosettle)
        a.ins = ins
        a.prof_on = False
        a("s_memrealtime s[90:91]")
    def ts(k):
        if prof:
            a("s_memrealtime s[92:93]")
            a("s_waitcnt lgkmcnt(0)")
            a(f"s_mov_b32 s{94+k}, s92")
    H, POS, EA, SRC, DST, WE, WX, WH, WS = 4, 6, 8, 10, 12, 14, 16, 18, 20
    a("s_load_dwordx16 s[4:19], s[0:1], 0")
    a("s_load_dwordx2 s[20:21], s[0:1], 80")
    a(f"s_cmp_lt_u32 s2, {K1_NBIN}")
    a("s_cbranch_scc1 .K1_BIN")
    a(f"s_cmp_lt_u32 s2, {K1_WP0}")
    a("s_cbranch_scc1 .K1_GEMM")
    a(f"s_cmp_lt_u32 s2, {K1_WSM}")
    a("s_cbranch_scc1 .K1_WPREP")
    a(f"s_cmp_eq_u32 s2, {K1_WSM}")
    a("s_cbranch_scc1 .K1_WSM")
    a("s_endpgm")

    a.prof_on = True
    a.label(".K1_BIN")
    LK, LE = 2048, 26624
    a("v_lshlrev_b32 v2, 2, v0")
    a("v_lshlrev_b32 v3, 3, v0")
    a("s_mul_i32 s40, s2, 10000")
    a("s_add_u32 s41, s40, 4096")
    a("s_add_u32 s42, s40, 8192")
    a("s_mul_i32 s43, s2, 20000")
    for j in range(1, 5): a(f"s_add_u32 s{43+j}, s43, {4096*j}")
    a("s_waitcnt lgkmcnt(0)")
    srd(a, 24, DST, DST+1, 640000)
    srd(a, 28, SRC, SRC+1, 640000)
    srd(a, 32, EA, EA+1, 1280000)
    srd(a, 36, WS, WS+1, WS_SIZE)
    DV, SV, EV, Q, CA, RK, KEY = 10, 15, 20, 30, 35, 40, 50
    for j in range(5):
        a(f"buffer_load_dword v{DV+j}, v2, s[24:27], s{40+j//2} offen offset:{2048*(j&1)}")
    for j in range(5):
        a(f"buffer_load_dword v{SV+j}, v2, s[28:31], s{40+j//2} offen offset:{2048*(j&1)}")
    for j in range(5):
        a(f"buffer_load_dwordx2 v[{EV+2*j}:{EV+2*j+1}], v3, s[32:35], s{43+j} offen")
    a("v_lshlrev_b32 v1, 4, v0")
    for r in range(4, 8): a(f"v_mov_b32 v{r}, -1")
    a("v_mov_b32 v8, 0")
    a("v_mov_b32 v9, 1")
    a("ds_write_b32 v2, v8")
    for j in range(3): a(f"ds_write_b128 v1, v[4:7] offset:{LK+8192*j}")
    a("s_movk_i32 s50, 452")
    a("v_cmp_gt_u32 s[48:49], s50, v0")
    a("v_cmp_gt_u32 s[84:85], 40, v0")
    a("s_movk_i32 s50, 80")
    a("v_cmp_gt_u32 s[86:87], s50, v0")
    a("v_lshrrev_b32 v4, 2, v0")
    a("v_and_b32 v5, 3, v0")
    a("v_lshlrev_b32 v5, 4, v5")
    a("v_lshl_add_u32 v6, v4, 12, v5")
    a("v_lshrrev_b32 v4, 3, v0")
    a("v_and_b32 v5, 7, v0")
    a("v_lshlrev_b32 v5, 4, v5")
    a("v_lshl_add_u32 v7, v4, 13, v5")
    a("s_lshl_b32 s76, s2, 6")
    a(f"s_add_u32 s76, s76, {WS_KEY}")
    a("s_add_u32 s77, s76, 524288")
    a("s_add_u32 s83, s76, 1048576")
    a("s_lshl_b32 s78, s2, 7")
    a(f"s_add_u32 s78, s78, {WS_EAS}")
    for j in range(1, 5): a(f"s_add_u32 s{78+j}, s78, {524288*j}")
    a("s_waitcnt lgkmcnt(0)")
    a("s_barrier")
    a("s_waitcnt vmcnt(10)")
    ts(0)
    for j in range(5):
        a(f"v_mul_u32_u24 v{Q+j}, 13108, v{DV+j}")
        a(f"v_lshrrev_b32 v{CA+j}, 17, v{Q+j}")
        a(f"v_and_b32 v{CA+j}, 0x3fc, v{CA+j}")
        if j == 4: a("s_mov_b64 exec, s[48:49]")
        a(f"ds_add_rtn_u32 v{RK+j}, v{CA+j}, v9")
        if j == 4: a("s_mov_b64 exec, -1")
    for j in range(5):
        a(f"v_lshrrev_b32 v{Q+j}, 16, v{Q+j}")
        a(f"v_mad_i32_i24 v55, v{Q+j}, -5, v{DV+j}")
        a(f"v_lshlrev_b32 v56, 2, v{Q+j}")
        a(f"v_and_b32 v56, 0x1c, v56")
        a(f"v_lshl_or_b32 v55, v55, 5, v56")
        a(f"v_lshl_or_b32 v{KEY+j}, v{CA+j}, 20, v55")
    a("s_waitcnt vmcnt(5)")
    for j in range(5):
        a(f"v_lshl_or_b32 v{KEY+j}, v{SV+j}, 8, v{KEY+j}")
    a("s_waitcnt vmcnt(0) lgkmcnt(0)")
    OK = 52
    OV = 62
    for j in range(5):
        a(f"v_cmp_gt_u32 s[{OK+2*j}:{OK+2*j+1}], 16, v{RK+j}")
        a(f"v_lshlrev_b32 v55, 2, v{RK+j}")
        a(f"v_lshl_add_u32 v55, v{CA+j}, 4, v55")
        a(f"v_lshlrev_b32 v56, 1, v55")
        if j == 4:
            a(f"s_andn2_b64 s[{OV+2*j}:{OV+2*j+1}], s[48:49], s[{OK+2*j}:{OK+2*j+1}]")
            a(f"s_and_b64 exec, s[48:49], s[{OK+2*j}:{OK+2*j+1}]")
        else:
            a(f"s_not_b64 s[{OV+2*j}:{OV+2*j+1}], s[{OK+2*j}:{OK+2*j+1}]")
            a(f"s_mov_b64 exec, s[{OK+2*j}:{OK+2*j+1}]")
        a(f"ds_write_b32 v55, v{KEY+j} offset:{LK}")
        a(f"ds_write_b64 v56, v[{EV+2*j}:{EV+2*j+1}] offset:{LE}")
        a("s_mov_b64 exec, -1")
    a(f"s_or_b64 s[72:73], s[{OV}:{OV+1}], s[{OV+2}:{OV+3}]")
    a(f"s_or_b64 s[74:75], s[{OV+4}:{OV+5}], s[{OV+6}:{OV+7}]")
    a(f"s_or_b64 s[72:73], s[72:73], s[{OV+8}:{OV+9}]")
    a(f"s_or_b64 s[72:73], s[72:73], s[74:75]")
    a("s_cbranch_scc0 .K1_BIN_NOOVF")
    a("s_movk_i32 s51, 1000")
    for j in range(5):
        a(f"v_lshrrev_b32 v{CA+j}, 7, v{CA+j}")
        a(f"v_lshl_add_u32 v{CA+j}, v{CA+j}, 3, s51")
        a(f"s_mov_b64 exec, s[{OV+2*j}:{OV+2*j+1}]")
        a(f"ds_add_rtn_u32 v{RK+j}, v{CA+j}, v9")
        a("s_mov_b64 exec, -1")
    a("v_mov_b32 v57, -2")
    a("s_waitcnt lgkmcnt(0)")
    for j in range(5):
        a(f"v_cmp_gt_u32 vcc, 31, v{RK+j}")
        a(f"v_min_u32 v55, 31, v{RK+j}")
        a(f"v_cndmask_b32 v{KEY+j}, v57, v{KEY+j}, vcc")
        a(f"v_lshlrev_b32 v55, 2, v55")
        a(f"v_lshl_add_u32 v55, v{CA+j}, 4, v55")
        a(f"v_lshlrev_b32 v56, 1, v55")
        a(f"s_mov_b64 exec, s[{OV+2*j}:{OV+2*j+1}]")
        a(f"ds_write_b32 v55, v{KEY+j} offset:{LK}")
        a(f"ds_write_b64 v56, v[{EV+2*j}:{EV+2*j+1}] offset:{LE}")
        a("s_mov_b64 exec, -1")
    a.label(".K1_BIN_NOOVF")
    a("s_waitcnt lgkmcnt(0)")
    a("s_barrier")
    ts(1)
    a("s_mov_b64 exec, s[86:87]")
    a(f"ds_read_b128 v[34:37], v1 offset:{LE+32768}")
    a(f"ds_read_b128 v[38:41], v1 offset:{LK+16384}")
    a("s_mov_b64 exec, -1")
    for j in range(2): a(f"ds_read_b128 v[{10+4*j}:{13+4*j}], v1 offset:{LK+8192*j}")
    for j in range(4): a(f"ds_read_b128 v[{18+4*j}:{21+4*j}], v1 offset:{LE+8192*j}")
    for j in range(6):
        a(f"s_waitcnt lgkmcnt({5-j})")
        a(f"buffer_store_dwordx4 v[{10+4*j}:{13+4*j}], v{6 if j < 2 else 7}, s[36:39], s{76+j} offen{ST}")
    a("s_mov_b64 exec, s[86:87]")
    a(f"buffer_store_dwordx4 v[34:37], v7, s[36:39], s82 offen{ST}")
    a("s_mov_b64 exec, s[84:85]")
    a(f"buffer_store_dwordx4 v[38:41], v6, s[36:39], s83 offen{ST}")
    a("s_endpgm")

    a.label(".K1_GEMM")
    a(f"s_sub_u32 s3, s2, {K1_GEMM0}")
    a("s_lshl_b32 s40, s3, 14")
    a("v_lshrrev_b32 v1, 6, v0")
    a("v_and_b32 v2, 63, v0")
    a("v_readfirstlane_b32 s41, v1")
    a("v_lshrrev_b32 v3, 4, v2")
    a("v_and_b32 v4, 15, v2")
    a("v_lshl_add_u32 v5, v1, 3, v3")
    a("v_and_b32 v6, 15, v5")
    a("v_xor_b32 v6, v6, v4")
    a("v_lshlrev_b32 v6, 4, v6")
    a("v_lshl_add_u32 v6, v5, 8, v6")
    a("v_xor_b32 v7, 64, v6")
    a("v_lshl_add_u32 v8, v1, 4, v3")
    a("v_lshlrev_b32 v9, 1, v3")
    a("v_xor_b32 v9, v9, v4")
    a("v_lshlrev_b32 v9, 4, v9")
    a("v_lshl_add_u32 v9, v8, 8, v9")
    a("v_xor_b32 v10, 128, v9")
    a("s_lshl_b32 s42, s41, 11")
    a("s_lshl_b32 s43, s41, 12")
    a("s_add_u32 s43, s43, 16384")
    a("s_waitcnt lgkmcnt(0)")
    srd(a, 24, H, H+1, 2560000)
    srd(a, 28, WE, WE+1, 66816)
    srd(a, 32, POS, POS+1, 60000)
    srd(a, 36, WS, WS+1, WS_SIZE)
    a("s_mov_b32 s44, 32768")
    a("s_mov_b32 m0, s43")
    for j in range(4):
        a(f"buffer_load_dwordx4 v{9 if j < 2 else 10}, s[28:31], s44 offen offset:{1024*j} lds")
    a("s_mov_b32 m0, s42")
    a("buffer_load_dwordx4 v6, s[24:27], s40 offen lds")
    a("buffer_load_dwordx4 v7, s[24:27], s40 offen offset:1024 lds")
    a("s_cmp_lg_u32 s41, 0")
    a("s_cbranch_scc1 .K1_G_NOPOS")
    a("s_lshl_b32 s45, s3, 6")
    a("v_add_u32 v11, s45, v2")
    a("v_mul_u32_u24 v12, 6, v11")
    a("buffer_load_ushort v14, v12, s[32:35], 0 offen")
    a("buffer_load_ushort v15, v12, s[32:35], 0 offen offset:2")
    a("buffer_load_ushort v16, v12, s[32:35], 0 offen offset:4")
    a("v_lshlrev_b32 v13, 4, v11")
    a(f"s_mov_b32 s46, {WS_POSF}")
    a("v_mov_b32 v17, 0")
    a("s_waitcnt vmcnt(0)")
    for r in range(3): a(f"v_lshlrev_b32 v{14+r}, 16, v{14+r}")
    a(f"buffer_store_dwordx4 v[14:17], v13, s[36:39], s46 offen{ST}")
    a.label(".K1_G_NOPOS")
    a("v_and_b32 v11, 3, v1")
    a("v_lshrrev_b32 v12, 2, v1")
    a("v_lshl_add_u32 v13, v11, 4, v4")
    a("v_xor_b32 v14, v3, v4")
    a("v_lshlrev_b32 v14, 4, v14")
    a("v_lshl_add_u32 v14, v13, 8, v14")
    for ks in range(1, 4): a(f"v_xor_b32 v{14+ks}, {64*ks}, v14")
    a("v_lshrrev_b32 v18, 2, v4")
    a("v_and_b32 v19, 1, v3")
    a("v_lshl_or_b32 v19, v19, 2, v18")
    a("v_lshlrev_b32 v20, 2, v12")
    a("v_xor_b32 v19, v19, v20")
    a("v_lshlrev_b32 v19, 5, v19")
    a("v_and_b32 v20, 3, v4")
    a("v_lshl_add_u32 v19, v20, 3, v19")
    a("v_lshl_add_u32 v18, v3, 3, v18")
    a("v_lshl_add_u32 v19, v18, 8, v19")
    for cb in range(1, 4): a(f"v_xor_b32 v{19+cb}, {32*cb}, v19")
    a("v_lshlrev_b32 v23, 2, v3")
    a("v_lshl_add_u32 v23, v11, 4, v23")
    a("v_lshlrev_b32 v23, 8, v23")
    a("v_lshl_add_u32 v23, v12, 7, v23")
    a("v_lshl_add_u32 v23, v4, 3, v23")
    a(f"s_add_u32 s45, s40, {WS_BT}")
    a(f"s_mov_b32 s46, {NLOG2E}")
    a("s_waitcnt vmcnt(0)")
    ts(0)
    a("s_barrier")
    ts(1)
    AF = 24
    BF = 40
    D = 104
    for ks in range(4): a(f"ds_read_b128 v[{AF+4*ks}:{AF+4*ks+3}], v{14+ks}")
    for ks in range(4):
        for cb in range(4):
            b = BF + 16*ks + 4*cb
            for hf in range(2):
                a(f"ds_read_b64_tr_b16 v[{b+2*hf}:{b+2*hf+1}], v{19+cb} offset:{16384 + ks*8192 + hf*1024}")
    for ks in range(4):
        for cb in range(4):
            n_after = (3-ks)*8 + (3-cb)*2
            a(f"s_waitcnt lgkmcnt({min(n_after,15)})")
            b = BF + 16*ks + 4*cb
            c = "0" if ks == 0 else f"v[{D+4*cb}:{D+4*cb+3}]"
            a(f"v_mfma_f32_16x16x32_bf16 v[{D+4*cb}:{D+4*cb+3}], v[{AF+4*ks}:{AF+4*ks+3}], v[{b}:{b+3}], {c}")
    for cb in range(4):
        for r in range(4): a(f"v_mul_f32 v{D+4*cb+r}, s46, v{D+4*cb+r}")
    for r in range(4):
        a(f"v_cvt_pk_bf16_f32 v{40+2*r}, v{D+r}, v{D+4+r}")
        a(f"v_cvt_pk_bf16_f32 v{41+2*r}, v{D+8+r}, v{D+12+r}")
        a(f"buffer_store_dwordx2 v[{40+2*r}:{41+2*r}], v23, s[36:39], s45 offen offset:{256*r}{ST}")
    a("s_endpgm")

    a.label(".K1_WPREP")
    a(f"s_sub_u32 s3, s2, {K1_WP0}")
    a("s_and_b32 s40, s3, 3")
    a("s_lshr_b32 s41, s3, 2")
    a("s_lshl_b32 s40, s40, 9")
    a("v_add_u32 v1, s40, v0")
    a("v_lshrrev_b32 v2, 8, v1")
    a("v_bfe_u32 v3, v1, 6, 2")
    a("v_bfe_u32 v4, v1, 4, 2")
    a("v_and_b32 v5, 15, v1")
    a("v_lshl_add_u32 v6, v2, 4, v5")
    a("v_lshlrev_b32 v7, 2, v3")
    a("v_add_u32 v7, v7, v4")
    a("v_lshlrev_b32 v7, 11, v7")
    a("v_lshlrev_b32 v16, 4, v1")
    a("s_waitcnt lgkmcnt(0)")
    srd(a, 28, WE, WE+1, 66816)
    srd(a, 32, WH, WH+1, 65536)
    srd(a, 36, WS, WS+1, WS_SIZE)
    a("s_cmp_eq_u32 s41, 1")
    a("s_cbranch_scc1 .K1_WP1")
    a("s_cmp_eq_u32 s41, 2")
    a("s_cbranch_scc1 .K1_WP2")
    def ld8(srdn, addr, offs, soffs=None):
        for t in range(8):
            so = "0" if soffs is None else f"s{soffs+t}"
            a(f"buffer_load_ushort v{20+t}, v{addr}, s[{srdn}:{srdn+3}], {so} offen offset:{offs[t]}")
    def st(off):
        a(f"s_mov_b32 s42, {off}")
        a("s_waitcnt vmcnt(0)")
        for t in range(4): a(f"v_lshl_or_b32 v{10+t}, v{21+2*t}, 16, v{20+2*t}")
        a(f"buffer_store_dwordx4 v[10:13], v16, s[36:39], s42 offen{ST}")
        a("s_endpgm")
    a("v_and_b32 v8, 64, v6")
    a("v_and_b32 v9, 3, v6")
    a("v_lshl_add_u32 v8, v9, 4, v8")
    a("v_bfe_u32 v9, v6, 2, 4")
    a("v_add_u32 v8, v8, v9")
    a("v_lshl_add_u32 v8, v8, 1, v7")
    ld8(28, 8, [256*t for t in range(8)])
    st(WS_W1F)
    a.label(".K1_WP1")
    a("v_lshl_add_u32 v8, v6, 1, v7")
    ld8(32, 8, [256*t for t in range(8)])
    st(WS_WH1F)
    a.label(".K1_WP2")
    a("v_lshrrev_b32 v8, 1, v3")
    a("v_lshlrev_b32 v8, 6, v8")
    a("v_and_b32 v9, 1, v3")
    a("v_lshl_add_u32 v8, v9, 3, v8")
    a("v_and_b32 v9, 1, v4")
    a("v_lshl_add_u32 v8, v9, 2, v8")
    a("v_lshrrev_b32 v9, 1, v4")
    a("v_add_u32 v8, v8, v9")
    a("v_lshlrev_b32 v8, 8, v8")
    a("v_lshl_add_u32 v8, v6, 1, v8")
    for t in range(8): a(f"s_mov_b32 s{44+t}, {32768 + 4096*(t&3)}")
    ld8(32, 8, [512*(t>>2) for t in range(8)], soffs=44)
    st(WS_WH2F)

    a.label(".K1_WSM")
    a("v_lshrrev_b32 v1, 7, v0")
    a("v_readfirstlane_b32 s3, v1")
    a("v_and_b32 v6, 127, v0")
    a("s_waitcnt lgkmcnt(0)")
    srd(a, 28, WE, WE+1, 66816)
    srd(a, 32, WX, WX+1, 256)
    srd(a, 36, WS, WS+1, WS_SIZE)
    a("s_cmp_eq_u32 s3, 1")
    a("s_cbranch_scc1 .K1_WXK")
    a("s_cmp_lg_u32 s3, 0")
    a("s_cbranch_scc1 .K1_END")
    a("v_and_b32 v8, 64, v6")
    a("v_and_b32 v9, 3, v6")
    a("v_lshl_add_u32 v8, v9, 4, v8")
    a("v_bfe_u32 v9, v6, 2, 4")
    a("v_add_u32 v8, v8, v9")
    a("v_lshlrev_b32 v8, 1, v8")
    a("s_mov_b32 s40, 65536")
    for t in range(5): a(f"buffer_load_ushort v{10+t}, v8, s[28:31], s40 offen offset:{256*t}")
    a(f"s_mov_b32 s41, {NLOG2E}")
    a(f"s_mov_b32 s42, {WS_WSM}")
    a("v_lshlrev_b32 v16, 1, v6")
    a("s_waitcnt vmcnt(0)")
    for t in range(5):
        a(f"v_lshlrev_b32 v{10+t}, 16, v{10+t}")
        a(f"v_mul_f32 v{10+t}, s41, v{10+t}")
    a("v_cvt_pk_bf16_f32 v20, v11, v12")
    a("v_cvt_pk_bf16_f32 v21, v13, v14")
    a("v_cvt_pk_bf16_f32 v22, v10, v10")
    a("v_lshlrev_b32 v17, 16, v22")
    a("v_sub_f32 v17, v10, v17")
    a("v_cvt_pk_bf16_f32 v22, v10, v17")
    a("v_mov_b32 v23, 0")
    for t in range(4):
        a(f"buffer_store_short v{20+t}, v16, s[36:39], s42 offen offset:{512*t}{ST}")
        a(f"buffer_store_short_d16_hi v{20+t}, v16, s[36:39], s42 offen offset:{512*t+256}{ST}")
    a("s_endpgm")
    a.label(".K1_WXK")
    a("v_and_b32 v8, 64, v6")
    a("v_and_b32 v9, 3, v6")
    a("v_lshl_add_u32 v8, v9, 4, v8")
    a("v_bfe_u32 v9, v6, 5, 1")
    a("v_lshl_add_u32 v8, v9, 3, v8")
    a("v_bfe_u32 v9, v6, 2, 2")
    a("v_lshl_add_u32 v8, v9, 1, v8")
    a("v_bfe_u32 v9, v6, 4, 1")
    a("v_add_u32 v8, v8, v9")
    a("v_lshlrev_b32 v8, 1, v8")
    a("buffer_load_ushort v10, v8, s[32:35], 0 offen")
    a(f"s_mov_b32 s42, {WS_WXK}")
    a("v_lshlrev_b32 v16, 1, v6")
    a("s_waitcnt vmcnt(0)")
    a(f"buffer_store_short v10, v16, s[36:39], s42 offen{ST}")
    a.label(".K1_END")
    a("s_endpgm")
```

```python
from asmfw import *
from k1b import *

K2_GRID = 250
K2_BLOCK = 1024
L_CNT  = 0
L_POS  = 64
L_R    = 1152
RQ     = 208
RT     = 8 * RQ
L_SRC  = 55296
L_RING = 59392
RINGW  = 4224
L_HT   = 126976
L_AT   = 137216
TS     = 264
L_H1   = L_AT + 40 * TS
L_WSM  = L_H1 + 40 * TS
L_WXK  = L_WSM + 2048
L_ZERO = L_WSM + 1536
K2_LDS = L_WSM + 3072
PADSRC = 0x40000000
NLN2 = 0xBF317218

ACC0, ACC1, TA, TB, E, X, S, BF = 0, 16, 32, 48, 64, 80, 84, 92
SEL0, SEL1, ONE, BX0, BX1 = 100, 104, 108, 112, 116
aX, aS, aSRC, aB, cof, LANE, vOUT, vDUM = 120, 121, 122, 123, 124, 125, 126, 127

sH, sPOS, sEA, sSRC, sDST = 4, 6, 8, 10, 12
sOUT, sWS = 20, 22
R_WS, R_H, R_BT, R_OUT, R_A, R_B, R_C = 24, 28, 32, 36, 44, 48, 52
sW, sHF, sG, sCNT, sREM, sLAST, sSLOW = 56, 57, 58, 59, 60, 61, 62
sDMA = 64
sRING = 68
sT = 70
sCM = 80
sVM = 84
sPF, sPFO, sOVE = 88, 89, 90
sK128, sL2E = 91, 92
sBATCH, sOVER = 96, 97
sPEND = 98
sB = 2
WSR = f"s[{R_WS}:{R_WS+3}]"

def mfma32(a, d, x, y, c):
    cs = "0" if c is None else f"v[{c}:{c+15}]"
    a(f"v_mfma_f32_32x32x16_bf16 v[{d}:{d+15}], v[{x}:{x+3}], v[{y}:{y+3}], {cs}")
def mfma16(a, d, x, y, c):
    cs = "0" if c is None else f"v[{c}:{c+3}]"
    a(f"v_mfma_f32_16x16x32_bf16 v[{d}:{d+3}], v[{x}:{x+3}], v[{y}:{y+3}], {cs}")

def zero_fill(a, tid, t, lab):
    a(f"v_lshlrev_b32 v{t}, 4, v{tid}")
    for r in range(4): a(f"v_mov_b32 v{t+2+r}, 0")
    for j in range(3): a(f"ds_write_b128 v{t}, v[{t+2}:{t+5}] offset:{16384*j}")
    a(f"v_lshlrev_b32 v{t+1}, 2, v{tid}")
    a(f"v_mov_b32 v{t+6}, {PADSRC}")
    a(f"ds_write_b32 v{t+1}, v{t+6} offset:{L_SRC}")
    a(f"s_cmp_gt_u32 s{sW}, 5")
    a(f"s_cbranch_scc1 {lab}")
    a(f"ds_write_b128 v{t}, v[{t+2}:{t+5}] offset:49152")
    a.label(lab)

def cand_issue(a, c, vm, one, t, extra=None):
    PS, KEY, PD, RK, CN, I16, S256 = c+2, c+5, c+6, c+9, c+10, c+11, c+12
    a(f"v_and_b32 v{CN}, 0x1c, v{KEY}")
    a(f"s_mov_b64 exec, s[{vm}:{vm+1}]")
    a(f"ds_add_rtn_u32 v{RK}, v{CN}, v{one} offset:{L_CNT}")
    a("s_mov_b64 exec, -1")
    a(f"v_and_b32 v{S256}, 0x3fff00, v{KEY}")
    a(f"v_lshrrev_b32 v{I16}, 1, v{KEY}")
    a(f"v_lshrrev_b32 v{t}, 4, v{S256}")
    a(f"v_and_b32 v{I16}, 0x70, v{I16}")
    a(f"buffer_load_dwordx3 v[{PS}:{PS+2}], v{t}, {WSR}, s{sPF} offen")
    a(f"v_mad_u32_u24 v{t+1}, v{CN}, 20, v{I16}")
    a(f"buffer_load_dwordx3 v[{PD}:{PD+2}], v{t+1}, {WSR}, s{sPFO} offen")
    if extra: extra()

def cand_commit(a, c, vm, cm, t):
    RK, CN, S256 = c+9, c+10, c+12
    a(f"v_cmp_gt_u32 vcc, s{sK128}, v{RK}")
    a(f"v_lshl_add_u32 v{CN}, v{CN}, 5, v{RK}")
    a(f"v_lshlrev_b32 v{t}, 2, v{CN}")
    a(f"s_and_b64 s[{cm}:{cm+1}], vcc, s[{vm}:{vm+1}]")
    a(f"s_mov_b64 exec, s[{cm}:{cm+1}]")
    a(f"ds_write_b32 v{t}, v{S256} offset:{L_SRC}")
    a("s_mov_b64 exec, -1")

def cand_addr(a, c):
    RK, CN, I16 = c+9, c+10, c+11
    a(f"v_lshrrev_b32 v{CN}, 2, v{CN}")
    a(f"v_and_b32 v{RK}, 3, v{RK}")
    a(f"v_mul_u32_u24 v{CN}, {RQ}, v{CN}")
    a(f"v_lshrrev_b32 v{I16}, 1, v{I16}")
    a(f"v_lshl_add_u32 v{CN}, v{RK}, 1, v{CN}")
    a(f"v_add_u32 v{I16}, v{I16}, v{CN}")

def cand_build(a, c, cm, onebf, zero):
    EA, PS, PD, RD, RI = c, c+2, c+6, c+10, c+11
    for k in range(3): a(f"v_sub_f32 v{PS+k}, v{PD+k}, v{PS+k}")
    a(f"s_mov_b64 exec, s[{cm}:{cm+1}]")
    a(f"ds_write_b16 v{RI}, v{onebf} offset:{L_R}")
    a(f"v_cvt_pk_bf16_f32 v{PD}, v{PS}, v{PS+1}")
    a(f"v_cvt_pk_bf16_f32 v{PD+1}, v{PS+2}, v{zero}")
    a(f"ds_write_b16 v{RD}, v{EA} offset:{L_R+160}")
    a(f"v_dot2_f32_bf16 v{PS}, v{PD}, v{PD}, v{zero}")
    a(f"ds_write_b16_d16_hi v{RD}, v{EA} offset:{L_R+168}")
    a(f"v_dot2_f32_bf16 v{PS}, v{PD+1}, v{PD+1}, v{PS}")
    a(f"ds_write_b16 v{RD}, v{EA+1} offset:{L_R+176}")
    a(f"ds_write_b16_d16_hi v{RD}, v{EA+1} offset:{L_R+184}")
    a(f"ds_write_b16 v{RI}, v{PD} offset:{L_R+40}")
    a(f"v_cvt_pk_bf16_f32 v{PS}, v{PS}, v{PS}")
    a(f"ds_write_b16_d16_hi v{RI}, v{PD} offset:{L_R+80}")
    a(f"ds_write_b16 v{RI}, v{PD+1} offset:{L_R+120}")
    a(f"ds_write_b16 v{RD}, v{PS} offset:{L_R+192}")
    a(f"ds_write_b16 v{RD}, v{PS} offset:{L_R+200}")
    a("s_mov_b64 exec, -1")

def issue_gather(a, VO):
    for k in range(4): a(f"v_add_u32 v{VO+k}, v{VO+k}, v{cof}")
    for k in range(4):
        a(f"buffer_load_dwordx4 v{VO+k}, s[{R_BT}:{R_BT+3}], s{sDMA+k} offen offset:{1056*k} lds")

def issue_final(a, t):
    a(f"v_lshlrev_b32 v{t}, 4, v{LANE}")
    a(f"s_and_b32 s{sT}, s{sW}, 7")
    a(f"s_lshl_b32 s{sT+1}, s{sT}, 12")
    a(f"s_add_u32 s{sT+1}, s{sT+1}, {WS_WH2F}")
    for k in range(4):
        a(f"buffer_load_dwordx4 v{t}, {WSR}, s{sT+1} offen offset:{1024*k} lds")
    a(f"v_mul_u32_u24 v{t+1}, 13, v{LANE}")
    a(f"s_lshl_b32 s{sT+1}, s{sT}, 5")
    a(f"s_lshr_b32 s{sT+2}, s{sW}, 3")
    a(f"v_lshrrev_b32 v{t+1}, 6, v{t+1}")
    a(f"s_lshl_b32 s{sT+2}, s{sT+2}, 13")
    a(f"s_add_u32 s{sT+1}, s{sT+1}, s{sT+2}")
    a(f"v_mad_i32_i24 v{t+2}, v{t+1}, -5, v{LANE}")
    a(f"s_mul_i32 s{sT+2}, s{sB}, 10240")
    a(f"s_add_u32 s{sT+1}, s{sT+1}, s{sT+2}")
    a(f"buffer_load_dwordx2 v[{BF}:{BF+1}], v{vOUT}, s[{R_H}:{R_H+3}], s{sT+1} offen")
    a(f"v_lshlrev_b32 v{t}, 2, v{t+1}")
    a(f"s_add_u32 s{sT+3}, s{sT+1}, 4096")
    a(f"buffer_load_dwordx2 v[{BF+2}:{BF+3}], v{vOUT}, s[{R_H}:{R_H+3}], s{sT+3} offen")
    a(f"v_lshl_add_u32 v{t}, v{t+2}, 4, v{t}")
    a(f"s_mul_i32 s{sT+2}, s{sT}, 80")
    a(f"s_add_u32 s{sT+2}, s{sT+2}, s{sPFO}")
    a(f"s_sub_u32 s{sT+2}, s{sT+2}, 4")
    a(f"buffer_load_dword v{BF+4}, v{t}, {WSR}, s{sT+2} offen")
    a(f"v_mul_u32_u24 v{t+2}, 6, v{t+2}")
    a(f"v_lshl_add_u32 v{BF+5}, v{t+1}, 1, v{t+2}")

def rdS(a):
    a(f"ds_read2_b64 v[{S}:{S+3}], v{aS} offset0:0 offset1:{2*RQ//8}")
    a(f"ds_read2_b64 v[{S+4}:{S+7}], v{aS} offset0:{4*RQ//8} offset1:{6*RQ//8}")
def rdX(a, off):
    a(f"ds_read_b64_tr_b16 v[{X}:{X+1}], v{aX} offset:{off}")
    a(f"ds_read_b64_tr_b16 v[{X+2}:{X+3}], v{aX} offset:{off+32}")
def rdBF(a, u):
    a(f"ds_read_b128 v[{BF}:{BF+3}], v{aB} offset:{64*u}")
    a(f"ds_read_b128 v[{BF+4}:{BF+7}], v{aB} offset:{64*u+32}")

def phase(a, T, O, ACCo, nseg, BXo, nq, mid0=None, mid1=None, late0=None, late1=None):
    n = 4 * nq
    ev = {}
    def at(d, i, f): d.setdefault(min(i, n), []).append(f)
    at(ev, 0, lambda: mfma32(a, ACCo, O, S, ACCo))
    if nseg > 1: at(ev, 4, lambda: mfma32(a, ACCo, O+4, S+4, ACCo))
    if mid0: at(ev, 8, mid0)
    for r in range(n + 1):
        for f in ev.get(r, []): f()
        if r < n: a(f"v_exp_f32 v{E+r}, v{T+r}")
    mfma32(a, E, ONE, ONE, E)
    ev = {}
    if mid1: mid1()
    if BXo is not None:
        mfma32(a, O, X, BXo, None)
        at(ev, 2, lambda: mfma32(a, O, BF, SEL0, O))
        at(ev, 6, lambda: mfma32(a, O, BF+4, SEL1, O))
    if late0: at(ev, 10, late0)
    for r in range(n + 1):
        for f in ev.get(r, []): f()
        if r < n: a(f"v_rcp_f32 v{E+r}, v{E+r}")
    if late1: late1()
    for j in range(2 * nq): a(f"v_pk_mul_f32 v[{E+2*j}:{E+2*j+1}], v[{E+2*j}:{E+2*j+1}], v[{T+2*j}:{T+2*j+1}]")
    for j in range(2 * nq): a(f"v_cvt_pk_bf16_f32 v{T+j}, v{E+2*j}, v{E+2*j+1}")
    if nq & 1:
        a(f"v_mov_b32 v{T+2*nq}, 0")
        a(f"v_mov_b32 v{T+2*nq+1}, 0")

def group_addrs(a, t):
    a(f"v_and_b32 v{t}, 3, v{LANE}")
    a(f"v_bfe_u32 v{t+1}, v{LANE}, 4, 1")
    a(f"v_lshl_add_u32 v{t}, v{t+1}, 2, v{t}")
    a(f"v_bfe_u32 v{t+1}, v{LANE}, 2, 2")
    a(f"v_lshrrev_b32 v{t+2}, 5, v{LANE}")
    a(f"v_mul_u32_u24 v{aX}, {RQ}, v{t}")
    a(f"v_lshl_add_u32 v{aX}, v{t+1}, 3, v{aX}")
    a(f"v_mul_u32_u24 v{t+3}, 160, v{t+2}")
    a(f"s_mul_i32 s{sT}, s{sG}, {32*RQ}")
    a(f"s_add_u32 s{sT}, s{sT}, {L_R}")
    a(f"s_add_u32 s{sT+1}, s{sT}, 160")
    a(f"v_sub_u32 v{aX}, v{aX}, v{t+3}")
    a(f"v_add_u32 v{aX}, s{sT+1}, v{aX}")
    a(f"v_and_b32 v{t}, 31, v{LANE}")
    a(f"v_mul_u32_u24 v{aS}, {RQ}, v{t+2}")
    a(f"v_lshlrev_b32 v{t}, 3, v{t}")
    a(f"v_add3_u32 v{aS}, v{aS}, v{t}, s{sT}")
    a(f"s_lshl_b32 s{sT}, s{sG}, 9")
    a(f"s_add_u32 s{sT}, s{sT}, {L_SRC}")
    a(f"v_lshrrev_b32 v{aSRC}, 3, v{LANE}")
    a(f"v_lshl_add_u32 v{aSRC}, v{aSRC}, 4, s{sT}")

def read_counts_issue(a, t, z):
    a(f"ds_read_b128 v[{t}:{t+3}], v{z} offset:{L_CNT}")
    a(f"ds_read_b128 v[{t+4}:{t+7}], v{z} offset:{L_CNT+16}")
    a(f"ds_read_b32 v{t+8}, v{t+8} offset:{L_CNT}")
def read_counts_use(a, t):
    a(f"v_max3_u32 v{t}, v{t}, v{t+1}, v{t+2}")
    a(f"v_max3_u32 v{t+4}, v{t+4}, v{t+5}, v{t+6}")
    a(f"v_readfirstlane_b32 s{sCNT}, v{t+8}")
    a(f"v_max3_u32 v{t}, v{t}, v{t+3}, v{t+7}")
    a(f"v_max_u32 v{t}, v{t}, v{t+4}")
    a(f"s_min_u32 s{sCNT}, s{sCNT}, 128")
    a(f"v_readfirstlane_b32 s{sOVER}, v{t}")

TSREG = [3, 14, 15, 16, 17, 18, 19, 63, 69, 40, 41, 42]
PROF = False
def ts(a, k):
    if not PROF: return
    a("s_memrealtime s[100:101]")
    a("s_waitcnt lgkmcnt(0)")
    a(f"s_mov_b32 s{TSREG[k]}, s100")
def ts_store(a):
    if not PROF: return
    ts(a, 11)
    a("s_mov_b64 exec, 1")
    for k in range(12): a(f"v_mov_b32 v{40+k}, s{TSREG[k]}")
    a(f"v_mov_b32 v52, s{sCNT}")
    a(f"s_lshl_b32 s{sT+8}, s{sB}, 4")
    a(f"s_add_u32 s{sT+8}, s{sT+8}, s{sW}")
    a(f"s_lshl_b32 s{sT+8}, s{sT+8}, 6")
    a(f"s_add_u32 s{sT+8}, s{sT+8}, 0x700000")
    a("v_mov_b32 v56, 0")
    for k in range(3): a(f"buffer_store_dwordx4 v[{40+4*k}:{43+4*k}], v56, {WSR}, s{sT+8} offen offset:{16*k}")
    a(f"buffer_store_dword v52, v56, {WSR}, s{sT+8} offen offset:48")
    a("s_mov_b64 exec, -1")

def gen_k2(a, **kw):
    global PROF
    PROF = kw.get('prof', False)
    TOUCH = kw.get('touch', True)
    OST = kw.get('OST', '')
    if PROF:
        a("s_memrealtime s[100:101]")
    a("s_load_dwordx16 s[4:19], s[0:1], 0")
    a("s_load_dwordx2 s[20:21], s[0:1], 64")
    a("s_load_dwordx2 s[22:23], s[0:1], 80")
    a(f"s_cmp_lt_u32 s2, {K2_GRID}")
    a("s_cbranch_scc1 .K2_GO")
    a("s_endpgm")
    a.label(".K2_GO")
    WF, HF = 0, 16
    TID = vDUM
    a(f"v_mov_b32 v{TID}, v0")
    a(f"v_and_b32 v{LANE}, 63, v0")
    a("v_lshrrev_b32 v16, 6, v0")
    a(f"v_readfirstlane_b32 s{sW}, v16")
    a("v_lshlrev_b32 v96, 2, v0")
    a("v_lshlrev_b32 v97, 3, v0")
    a(f"v_lshlrev_b32 v18, 4, v{LANE}")
    a(f"s_lshl_b32 s{sT}, s{sB}, 12")
    a(f"s_add_u32 s{sT}, s{sT}, {WS_KEY}")
    a(f"s_lshr_b32 s{sT+1}, s{sB}, 5")
    a(f"s_lshl_b32 s{sOVE}, s{sT+1}, 14")
    a(f"s_add_u32 s{sOVE}, s{sOVE}, {WS_EAS + 250*8192}")
    a(f"s_lshl_b32 s{sT+1}, s{sT+1}, 13")
    a(f"s_add_u32 s{sT+1}, s{sT+1}, {WS_KEY + 250*4096}")
    a(f"s_add_u32 s{sBATCH}, s{sT+1}, 4096")
    a(f"s_lshl_b32 s{sT+2}, s{sB}, 13")
    a(f"s_add_u32 s{sT+2}, s{sT+2}, {WS_EAS}")
    a(f"s_lshr_b32 s{sHF}, s{sW}, 3")
    a(f"s_add_u32 s{sG}, s{sW}, s{sHF}")
    a(f"s_and_b32 s{sG}, s{sG}, 7")
    a(f"v_lshrrev_b32 v19, 4, v{LANE}")
    a(f"v_and_b32 v20, 15, v{LANE}")
    a(f"s_and_b32 s{sT+3}, s{sW}, 3")
    a(f"s_lshl_b32 s{sT+3}, s{sT+3}, 2")
    a(f"v_add_u32 v21, s{sT+3}, v19")
    a("v_xor_b32 v21, v21, v20")
    a("v_lshlrev_b32 v21, 4, v21")
    a("v_lshl_add_u32 v21, v19, 8, v21")
    a(f"s_lshl_b32 s{sT+4}, s{sW}, 10")
    a(f"s_mul_i32 s{sT+3}, s{sB}, 10240")
    a(f"s_add_u32 s{sT+3}, s{sT+3}, s{sT+4}")
    a(f"s_add_u32 s{sT+4}, s{sT+4}, {L_HT}")
    a(f"s_lshl_b32 s{sT+5}, s{sW}, 12")
    a(f"s_add_u32 s{sT+5}, s{sT+5}, {WS_W1F}")
    a(f"s_sub_u32 s{sT+6}, s{sW}, 10")
    a(f"s_min_u32 s{sT+6}, s{sT+6}, 2")
    a(f"s_lshl_b32 s{sT+6}, s{sT+6}, 10")
    a(f"s_add_u32 s{sT+7}, s{sT+6}, {L_WSM}")
    a(f"s_add_u32 s{sT+6}, s{sT+6}, {WS_WSM}")
    a(f"s_lshr_b32 s{sT+8}, s{sB}, 3")
    a(f"s_mul_i32 s{sT+8}, s{sT+8}, {640*128}")
    a(f"s_mul_i32 s{sT+9}, s{sW}, {40*128}")
    a(f"s_add_u32 s{sT+8}, s{sT+8}, s{sT+9}")
    a(f"s_add_u32 s{sT+8}, s{sT+8}, 4096")
    a(f"v_lshlrev_b32 v22, 7, v{LANE}")
    a("s_waitcnt lgkmcnt(0)")
    if PROF: a(f"s_mov_b32 s{TSREG[0]}, s100")
    ts(a, 1)
    srd(a, R_WS, sWS, sWS+1, WS_SIZE)
    srd(a, R_H, sH, sH+1, 2560000)
    srd(a, R_BT, sWS, sWS+1, 4096 + 2560000)
    CA, CB, CC = 64, 80, 40
    KC = CC + 5
    a(f"buffer_load_dword v{CA+5}, v96, {WSR}, s{sT} offen")
    a(f"buffer_load_dword v{CB+5}, v96, {WSR}, s{sT+1} offen")
    a(f"buffer_load_dword v{KC}, v96, {WSR}, s{sBATCH} offen")
    a(f"buffer_load_dwordx2 v[{CA}:{CA+1}], v97, {WSR}, s{sT+2} offen")
    a(f"s_cmp_gt_u32 s{sW}, 9")
    a("s_cbranch_scc1 .K2_DW")
    a(f"s_mov_b32 m0, s{sT+4}")
    a(f"buffer_load_dwordx4 v21, s[{R_H}:{R_H+3}], s{sT+3} offen lds")
    a("s_branch .K2_DD")
    a.label(".K2_DW")
    a(f"s_mov_b32 m0, s{sT+7}")
    a(f"buffer_load_dwordx4 v18, {WSR}, s{sT+6} offen lds")
    a.label(".K2_DD")
    for k in range(4): a(f"buffer_load_dwordx4 v[{WF+4*k}:{WF+4*k+3}], v18, {WSR}, s{sT+5} offen offset:{1024*k}")
    zero_fill(a, TID, 24, ".K2_ZF")
    NT = 1 if TOUCH else 0
    if TOUCH:
        a("s_mov_b32 exec_hi, 0xff")
        a(f"buffer_load_dword v{vDUM}, v22, s[{R_BT}:{R_BT+3}], s{sT+8} offen")
        a("s_mov_b32 exec_hi, -1")
    srd(a, R_OUT, sOUT, sOUT+1, 2620000)
    group_addrs(a, 24)
    a(f"s_mul_i32 s{sRING}, s{sW}, {RINGW}")
    a(f"s_add_u32 s{sRING}, s{sRING}, {L_RING}")
    a(f"v_and_b32 v24, 3, v{LANE}")
    a(f"v_bfe_u32 v25, v{LANE}, 2, 3")
    a(f"v_lshrrev_b32 v26, 5, v{LANE}")
    a(f"v_mul_u32_u24 v{aB}, 1056, v24")
    a(f"v_lshl_add_u32 v{aB}, v25, 7, v{aB}")
    a(f"v_lshl_add_u32 v25, v26, 4, s{sRING}")
    a(f"v_add_u32 v{aB}, v{aB}, v25")
    a(f"v_and_b32 v{cof}, 7, v{LANE}")
    a(f"v_lshlrev_b32 v{cof}, 4, v{cof}")
    a(f"s_lshl_b32 s{sDMA}, s{sHF}, 7")
    a(f"s_add_u32 s{sDMA}, s{sDMA}, 4096")
    for k in range(1, 4): a(f"s_sub_u32 s{sDMA+k}, s{sDMA}, {1056*k}")
    a("v_lshlrev_b32 v25, 8, v20")
    a(f"v_lshl_add_u32 v{vOUT}, v19, 3, v25")
    a(f"s_mov_b32 s{sPF}, {WS_POSF}")
    a(f"s_mul_i32 s{sPFO}, s{sB}, 640")
    a(f"s_add_u32 s{sPFO}, s{sPFO}, {WS_POSF}")
    a(f"s_movk_i32 s{sK128}, 128")
    a(f"s_mov_b32 s{sL2E}, {NLOG2E}")
    a(f"s_mov_b32 s{sL2E+1}, {NLOG2E}")
    a(f"s_mov_b32 s{sLAST}, 1")
    a(f"s_mov_b64 s[{sCM+2}:{sCM+3}], 0")
    a(f"v_and_b32 v27, 31, v{LANE}")
    a("v_and_b32 v28, 1, v27")
    a("v_lshlrev_b32 v28, 4, v28")
    a("v_mov_b32 v95, 0x3f80")
    a("v_lshlrev_b32 v28, v28, v95")
    a("v_lshlrev_b32 v29, 3, v26")
    a("v_sub_u32 v27, v27, v29")
    a("v_lshrrev_b32 v27, 1, v27")
    for m in range(4):
        a(f"v_cmp_eq_u32 vcc, {m}, v27")
        a(f"v_cmp_eq_u32 s[{sT}:{sT+1}], {8+m}, v27")
        a(f"v_cndmask_b32 v{SEL0+m}, 0, v28, vcc")
        a(f"v_cndmask_b32 v{SEL1+m}, 0, v28, s[{sT}:{sT+1}]")
    for m in range(4): a(f"v_mov_b32 v{ONE+m}, 0x3e803e80")
    HA, TW, BA = 112, 116, 77
    a("v_xor_b32 v27, v19, v20")
    a("v_lshlrev_b32 v27, 4, v27")
    a(f"s_mov_b32 s{sT}, {L_HT}")
    a(f"v_add3_u32 v{HA}, v27, v25, s{sT}")
    for ks in range(1, 4): a(f"v_xor_b32 v{HA+ks}, {64*ks}, v{HA}")
    a(f"s_and_b32 s{sT}, s{sW}, 7")
    a(f"s_lshl_b32 s{sT}, s{sT}, 5")
    a(f"s_mul_i32 s{sT+1}, s{sHF}, {40*TS}")
    a(f"s_add_u32 s{sT}, s{sT}, s{sT+1}")
    a(f"s_add_u32 s{sT}, s{sT}, {L_AT}")
    a(f"v_mul_u32_u24 v{TW}, {TS}, v20")
    a(f"v_lshl_add_u32 v27, v19, 3, s{sT}")
    a(f"v_add_u32 v{TW}, v{TW}, v27")
    a("v_and_b32 v27, 1, v19")
    a("v_lshlrev_b32 v27, 5, v27")
    a("v_lshl_add_u32 v27, v24, 3, v27")
    a(f"s_lshl_b32 s{sT}, s{sHF}, 7")
    a(f"v_add_u32 v27, s{sT}, v27")
    a(f"v_bfe_u32 v28, v{LANE}, 2, 2")
    a(f"s_mul_i32 s{sT}, s{sG}, {5*TS}")
    a(f"s_add_u32 s{sT}, s{sT}, {L_AT}")
    a(f"v_mul_u32_u24 v29, {TS}, v28")
    a(f"v_add_u32 v29, s{sT}, v29")
    a(f"s_mov_b32 s{sT+1}, {L_WSM}")
    a(f"v_lshl_add_u32 v30, v28, 8, s{sT+1}")
    a(f"v_cmp_gt_u32 vcc, 32, v{LANE}")
    a(f"v_cndmask_b32 v{BA}, v29, v30, vcc")
    a(f"v_add_u32 v{BA}, v{BA}, v27")
    a(f"v_add_u32 v30, 1024, v30")
    a(f"s_add_u32 s{sT}, s{sT}, {4*TS}")
    a(f"v_mov_b32 v29, s{sT}")
    a(f"v_mov_b32 v31, {L_ZERO}")
    a(f"v_cmp_eq_u32 s[{sT+2}:{sT+3}], 0, v28")
    a(f"v_cndmask_b32 v29, v31, v29, s[{sT+2}:{sT+3}]")
    a(f"v_cndmask_b32 v{BA+1}, v29, v30, vcc")
    a(f"v_add_u32 v{BA+1}, v{BA+1}, v27")
    a("v_mov_b32 v79, 0")
    a("v_mov_b32 v93, 1")
    a(f"s_lshl_b32 s{sT}, s{sG}, 2")
    a(f"v_mov_b32 v94, s{sT}")
    a("v_cmp_gt_u32 s[86:87], 8, v20")
    a(f"s_mov_b64 s[{sT+8}:{sT+9}], s[86:87]")
    a("s_waitcnt lgkmcnt(0)")
    a("s_barrier")
    ts(a, 2)
    a(f"s_waitcnt vmcnt({6+NT})")
    ts(a, 3)
    a(f"v_cmp_ne_u32 s[{sVM}:{sVM+1}], -1, v{CA+5}")
    cand_issue(a, CA, sVM, 93, 98)
    a(f"v_lshrrev_b32 v98, 22, v{CB+5}")
    a(f"v_cmp_ne_u32 vcc, -1, v{KC}")
    a(f"v_cmp_eq_u32 s[{sVM+2}:{sVM+3}], s{sB}, v98")
    a(f"s_mov_b32 m0, s{sRING}")
    a(f"s_or_b64 s[{sT}:{sT+1}], vcc, s[{sVM+2}:{sVM+3}]")
    a("s_cbranch_scc0 .K2_NOB")
    a("s_cbranch_vccz .K2_NOC")
    a(f"v_cmp_eq_u32 vcc, -2, v{KC}")
    a(f"v_lshrrev_b32 v98, 22, v{KC}")
    a(f"v_cmp_eq_u32 s[{sT}:{sT+1}], s{sB}, v98")
    a("v_mov_b32 v98, 0x10000")
    a("s_mov_b64 exec, vcc")
    a(f"ds_add_u32 v79, v98 offset:{L_CNT}")
    a("s_mov_b64 exec, -1")
    a(f"s_add_u32 s{sT+4}, s{sOVE}, 8192")
    cand_issue(a, CC, sT, 93, 98, extra=lambda: a(f"buffer_load_dwordx2 v[{CC}:{CC+1}], v97, {WSR}, s{sT+4} offen"))
    a("s_waitcnt lgkmcnt(0)")
    cand_commit(a, CC, sT, sT+2, 98)
    cand_addr(a, CC)
    a("s_waitcnt vmcnt(0)")
    cand_build(a, CC, sT+2, 95, 79)
    a.label(".K2_NOC")
    cand_issue(a, CB, sVM+2, 93, 98, extra=lambda: a(f"buffer_load_dwordx2 v[{CB}:{CB+1}], v97, {WSR}, s{sOVE} offen"))
    a("s_waitcnt lgkmcnt(0)")
    cand_commit(a, CB, sVM+2, sCM+2, 98)
    cand_addr(a, CB)
    a.label(".K2_NOB")
    a("s_waitcnt lgkmcnt(0)")
    cand_commit(a, CA, sVM, sCM, 98)
    a(f"s_waitcnt vmcnt({6+NT}) lgkmcnt(0)")
    a("s_barrier")
    ts(a, 4)
    VO = 96
    a(f"ds_read_b128 v[{VO}:{VO+3}], v{aSRC}")
    a(f"ds_read_b32 v94, v94 offset:{L_CNT}")
    a(f"ds_read_b128 v[{HF+40}:{HF+43}], v79 offset:{L_CNT}")
    a(f"ds_read_b128 v[{HF+44}:{HF+47}], v79 offset:{L_CNT+16}")
    for i in range(10):
        rb, ks = divmod(i, 4)
        a(f"ds_read_b128 v[{HF+4*i}:{HF+4*i+3}], v{HA+ks} offset:{4096*rb}")
    a("s_waitcnt lgkmcnt(13)")
    issue_gather(a, VO)
    ts(a, 5)
    a("s_waitcnt lgkmcnt(10)")
    t = HF + 40
    a(f"v_max3_u32 v{t}, v{t}, v{t+1}, v{t+2}")
    a(f"v_max3_u32 v{t+4}, v{t+4}, v{t+5}, v{t+6}")
    a(f"v_readfirstlane_b32 s{sCNT}, v94")
    a(f"v_max3_u32 v{t}, v{t}, v{t+3}, v{t+7}")
    a(f"v_max_u32 v94, v{t}, v{t+4}")
    for i in range(10, 12):
        rb, ks = divmod(i, 4)
        a(f"ds_read_b128 v[{HF+4*i}:{HF+4*i+3}], v{HA+ks} offset:{4096*rb}")
    a(f"s_min_u32 s{sCNT}, s{sCNT}, 128")
    a(f"v_readfirstlane_b32 s{sOVER}, v94")
    cand_addr(a, CA)
    a(f"s_waitcnt vmcnt({6+NT})")
    DD = [VO, HA, HF]
    for i in range(12):
        rb, ks = divmod(i, 4)
        a(f"s_waitcnt lgkmcnt({11-i})")
        mfma16(a, DD[rb], WF+4*ks, HF+4*i, None if ks == 0 else DD[rb])
    a(f"s_cmp_gt_u32 s{sOVER}, 128")
    a(f"s_cselect_b32 s{sSLOW}, 1, 0")
    a("s_waitcnt vmcnt(4)")
    a("s_cbranch_scc1 .K2_NOBUILD", nosettle=True)
    ts(a, 6)
    cand_build(a, CA, sCM, 95, 79)
    a(f"s_cmp_eq_u64 s[{sCM+2}:{sCM+3}], 0")
    a("s_cbranch_scc1 .K2_NOBUILD", nosettle=True)
    cand_build(a, CB, sCM+2, 95, 79)
    a.label(".K2_NOBUILD")
    a.nop(8)
    for rb in range(3):
        d = DD[rb]
        for j in range(2): a(f"v_pk_mul_f32 v[{d+2*j}:{d+2*j+1}], v[{d+2*j}:{d+2*j+1}], s[{sL2E}:{sL2E+1}]")
        a(f"v_cvt_pk_bf16_f32 v{d}, v{d}, v{d+1}")
        a(f"v_cvt_pk_bf16_f32 v{d+1}, v{d+2}, v{d+3}")
        if rb == 2: a(f"s_mov_b64 exec, s[{sT+8}:{sT+9}]")
        a(f"ds_write_b64 v{TW}, v[{d}:{d+1}] offset:{16*TS*rb}")
        if rb == 2: a("s_mov_b64 exec, -1")
    a(f"v_mov_b32 v{vDUM}, {L_ZERO}")
    a("s_waitcnt lgkmcnt(0)")
    a("s_barrier")
    ts(a, 7)
    a(f"ds_read_b128 v[{TB}:{TB+3}], v{vDUM}")
    for u in range(2):
        for hh in range(2):
            b = (BX0, BX1)[u] + 2 * hh
            a(f"ds_read_b64_tr_b16 v[{b}:{b+1}], v{BA+hh} offset:{64*u}")
    rdS(a)
    a("s_waitcnt lgkmcnt(6)")
    mfma32(a, ACC0, TB, ONE, None)
    mfma32(a, ACC1, TB, ONE, None)
    a(f"s_cmp_lg_u32 s{sSLOW}, 0")
    a("s_cbranch_scc1 .K2_SLOW")

    a.label(".K2_MAIN")
    a(f"s_cmp_eq_u32 s{sCNT}, 0")
    a("s_cbranch_scc1 .K2_EMPTY")
    a(f"s_mov_b32 s{sREM}, s{sCNT}")
    rdX(a, 0)
    a(f"ds_read_b128 v[{TB}:{TB+3}], v{vDUM}")
    a(f"ds_read_b128 v[{TB+4}:{TB+7}], v{vDUM}")
    a("s_waitcnt vmcnt(0)")
    ts(a, 8)
    rdBF(a, 0)
    a("s_waitcnt lgkmcnt(2)")
    mfma32(a, TA, X, BX0, None)
    a("s_waitcnt lgkmcnt(1)")
    mfma32(a, TA, BF, SEL0, TA)
    a("s_waitcnt lgkmcnt(0)")
    mfma32(a, TA, BF+4, SEL1, TA)
    a.settle()
    a.label(".K2_LOOP")
    a(f"s_cmp_le_u32 s{sREM}, 32")
    a("s_cbranch_scc1 .K2_LASTT")
    def mA0(): rdBF(a, 1); rdS(a)
    def mA1(): a("s_waitcnt lgkmcnt(2)")
    def lA0():
        a(f"ds_read_b128 v[{BF}:{BF+3}], v{aSRC} offset:128")
        rdX(a, RT)
    def lA1():
        a("s_waitcnt lgkmcnt(2)")
        issue_gather(a, BF)
    phase(a, TA, TB, ACC1, 2, BX1, 4, mA0, mA1, lA0, lA1)
    a(f"v_add_u32 v{aX}, {RT}, v{aX}")
    a(f"v_add_u32 v{aSRC}, 128, v{aSRC}")
    a(f"s_sub_u32 s{sREM}, s{sREM}, 32")
    def mB0():
        a("s_waitcnt vmcnt(0)")
        rdBF(a, 0)
    def mB1(): a("s_waitcnt lgkmcnt(0)")
    phase(a, TB, TA, ACC0, 2, BX0, 4, mB0, mB1)
    a(f"v_add_u32 v{aS}, {RT}, v{aS}")
    a("s_branch .K2_LOOP")
    a.label(".K2_LASTT")
    a(f"s_cmp_gt_u32 s{sREM}, 24")
    a("s_cbranch_scc1 .K2_Q4", nosettle=True)
    a(f"s_cmp_gt_u32 s{sREM}, 16")
    a("s_cbranch_scc1 .K2_Q3", nosettle=True)
    a(f"s_cmp_gt_u32 s{sREM}, 8")
    a("s_cbranch_scc1 .K2_Q2", nosettle=True)
    for nq in (1, 2, 3, 4):
        a.label(f".K2_Q{nq}")
        def lF1():
            a(f"s_cmp_eq_u32 s{sLAST}, 0")
            a(f"s_cbranch_scc1 .K2_NF{nq}", nosettle=True)
            a.nop(2)
            issue_final(a, X)
            a.label(f".K2_NF{nq}")
        phase(a, TA, TB, ACC1, 2, BX1, nq, mA0, mA1, None, lF1)
        a("s_waitcnt lgkmcnt(0)")
        ns = 2 if nq > 2 else 1
        phase(a, TB, TA, ACC0, ns, None, nq)
        mfma32(a, ACC1, TB, S, ACC1)
        if ns > 1: mfma32(a, ACC1, TB+4, S+4, ACC1)
        a("s_branch .K2_DONE", nosettle=True)
    a.label(".K2_EMPTY")
    a(f"s_cmp_eq_u32 s{sLAST}, 0")
    a("s_cbranch_scc1 .K2_SLOW_NEXT")
    issue_final(a, X)
    a.label(".K2_DONE")
    a(f"s_cmp_eq_u32 s{sLAST}, 0")
    a("s_cbranch_scc1 .K2_SLOW_NEXT", nosettle=True)

    ts(a, 9)
    a(f"v_lshrrev_b32 v{X}, 5, v{LANE}")
    a(f"v_and_b32 v{X+1}, 31, v{LANE}")
    a(f"s_lshl_b32 s{sT}, s{sHF}, 7")
    a(f"s_add_u32 s{sT}, s{sT}, {L_WXK}")
    a(f"v_lshl_add_u32 v{X+2}, v{X}, 5, s{sT}")
    for u in range(2):
        for m in range(2):
            a(f"ds_read_b128 v[{E+8*u+4*m}:{E+8*u+4*m+3}], v{X+2} offset:{64*u+16*m}")
    a(f"s_mul_i32 s{sT}, s{sG}, 5")
    a(f"v_add_u32 v{X+3}, s{sT}, v{X+1}")
    a(f"v_and_b32 v{S}, 15, v{X+3}")
    a(f"s_lshl_b32 s{sT}, s{sHF}, 3")
    a(f"v_lshl_add_u32 v{S+1}, v{X}, 1, s{sT}")
    a(f"v_xor_b32 v{S}, v{S}, v{S+1}")
    a(f"v_lshlrev_b32 v{S}, 4, v{S}")
    a(f"v_lshlrev_b32 v{X+3}, 8, v{X+3}")
    a(f"s_mov_b32 s{sT}, {L_HT}")
    a(f"v_add3_u32 v{S}, v{S}, v{X+3}, s{sT}")
    a(f"v_xor_b32 v{S+1}, 16, v{S}")
    a(f"v_xor_b32 v{S+2}, 64, v{S}")
    a(f"v_xor_b32 v{S+3}, 80, v{S}")
    a(f"v_cmp_gt_u32 s[{sT+2}:{sT+3}], 5, v{X+1}")
    a(f"s_lshl_b32 s{sT}, s{sG}, 7")
    a(f"v_lshl_add_u32 v{X+1}, v{X+1}, 2, s{sT}")
    for j in range(16): a(f"v_cvt_pk_bf16_f32 v{TA+j}, v{2*j}, v{2*j+1}")
    a(f"s_mov_b64 exec, s[{sT+2}:{sT+3}]")
    for k in range(4): a(f"ds_write_b128 v{S+k}, v[{TA+4*k}:{TA+4*k+3}]")
    a("s_mov_b64 exec, -1")
    a("s_waitcnt lgkmcnt(4)")
    for k in range(4): mfma32(a, ACC0, E+4*k, TA+4*k, None if k == 0 else ACC0)
    a(f"v_and_b32 v{ACC1}, 15, v{LANE}")
    a(f"v_lshrrev_b32 v{ACC1+1}, 4, v{LANE}")
    a(f"s_and_b32 s{sT+4}, s{sW}, 7")
    a(f"s_lshl_b32 s{sT+4}, s{sT+4}, 5")
    a(f"s_lshr_b32 s{sT+5}, s{sW}, 3")
    a(f"s_mul_i32 s{sT}, s{sT+5}, {32*TS}")
    a(f"s_add_u32 s{sT}, s{sT}, s{sT+4}")
    a(f"s_add_u32 s{sT}, s{sT}, {L_H1}")
    a(f"v_mul_u32_u24 v{ACC1+2}, {TS}, v{ACC1}")
    a(f"v_lshl_add_u32 v{ACC1+3}, v{ACC1+1}, 3, s{sT}")
    a(f"v_add_u32 v{ACC1+2}, v{ACC1+2}, v{ACC1+3}")
    a(f"ds_read_b64 v[{S+4}:{S+5}], v{ACC1+2}")
    a(f"ds_read_b64 v[{S+6}:{S+7}], v{ACC1+2} offset:{16*TS}")
    a(f"v_xor_b32 v{ACC1+1}, v{ACC1}, v{ACC1+1}")
    a(f"v_lshlrev_b32 v{ACC1+1}, 4, v{ACC1+1}")
    a(f"v_lshlrev_b32 v{ACC1+2}, 8, v{ACC1}")
    a(f"s_lshl_b32 s{sT+5}, s{sT+5}, 13")
    a(f"s_add_u32 s{sT}, s{sT+5}, {L_HT}")
    MA = ACC1 + 4
    a(f"v_add3_u32 v{MA}, v{ACC1+1}, v{ACC1+2}, s{sT}")
    for ks in range(1, 4): a(f"v_xor_b32 v{MA+ks}, {64*ks}, v{MA}")
    a(f"v_lshl_add_u32 v{ACC1+3}, v{LANE}, 4, s{sRING}")
    a(f"s_add_u32 s{sT+4}, s{sT+4}, s{sT+5}")
    a(f"s_mul_i32 s{sT+5}, s{sB}, 10240")
    a(f"s_add_u32 s{sT+4}, s{sT+4}, s{sT+5}")
    a(f"s_add_u32 s{sT+5}, s{sT+4}, 4096")
    a(f"s_mov_b32 s{sT+6}, {NLN2}")
    a("s_waitcnt vmcnt(0)")
    for ks in range(4): a(f"ds_read_b128 v[{E+4*ks}:{E+4*ks+3}], v{ACC1+3} offset:{1024*ks}")
    RES = ACC1 + 8
    CI = X
    for j in range(4):
        a(f"v_lshlrev_b32 v{RES+2*j}, 16, v{BF+j}")
        a(f"v_and_b32 v{RES+2*j+1}, 0xffff0000, v{BF+j}")
    a("s_mov_b64 exec, 0xfffe0")
    a(f"ds_add_f32 v{X+1}, v{ACC0} offset:{L_POS}")
    a("s_mov_b64 exec, -1")
    a("s_waitcnt lgkmcnt(5)")
    for j in range(4):
        a(f"v_lshlrev_b32 v{CI+2*j}, 16, v{S+4+j}")
        a(f"v_and_b32 v{CI+2*j+1}, 0xffff0000, v{S+4+j}")
    a(f"s_cmp_gt_u32 s{sW}, 7")
    a("s_waitcnt lgkmcnt(0)")
    a("s_barrier")
    ts(a, 10)
    if PROF: a(f"s_cmp_gt_u32 s{sW}, 7")
    a("s_cbranch_scc1 .K2_FIN1")
    def fin(nrb, mask=None):
        for rb in range(nrb):
            for ks in range(4):
                a(f"ds_read_b128 v[{TA+16*rb+4*ks}:{TA+16*rb+4*ks+3}], v{MA+ks} offset:{4096*rb}")
        if mask:
            a(f"s_and_b32 s{sT}, s{sW}, 7")
            a(f"s_lshl_b32 s{sT+1}, s{sT}, 7")
            a(f"v_lshl_add_u32 v{BF}, v{LANE}, 2, s{sT+1}")
            a(f"ds_read_b32 v{BF}, v{BF} offset:{L_POS}")
        ex = 1 if mask else 0
        for rb in range(nrb):
            for ks in range(4):
                a(f"s_waitcnt lgkmcnt({4*nrb-1-4*rb-ks+ex})")
                mfma16(a, CI+4*rb, E+4*ks, TA+16*rb+4*ks, CI+4*rb)
        if mask:
            a(f"s_mul_i32 s{sT}, s{sT}, 30")
            a(f"s_mul_i32 s{sT+1}, s{sB}, 240")
            a(f"s_add_u32 s{sT}, s{sT}, s{sT+1}")
            a(f"s_add_u32 s{sT}, s{sT}, {2560000-2}")
            a("s_waitcnt lgkmcnt(0)")
            a(f"v_fma_f32 v{BF}, v{BF}, s{sT+6}, v{BF+4}")
            a(f"v_cvt_pk_bf16_f32 v{BF}, v{BF}, v{BF}")
            a("s_mov_b64 exec, 0xfffe0")
            a(f"buffer_store_short v{BF}, v{BF+5}, s[{R_OUT}:{R_OUT+3}], s{sT} offen{OST}")
            a("s_mov_b64 exec, -1")
        n = 4 * nrb
        for r in range(n): a(f"v_exp_f32 v{r}, v{CI+r}")
        for j in range(n // 2): a(f"v_pk_add_f32 v[{2*j}:{2*j+1}], v[{2*j}:{2*j+1}], 1.0 op_sel_hi:[1,0]")
        for r in range(n): a(f"v_rcp_f32 v{r}, v{r}")
        for j in range(n // 2): a(f"v_pk_mul_f32 v[{2*j}:{2*j+1}], v[{2*j}:{2*j+1}], v[{CI+2*j}:{CI+2*j+1}]")
        for r in range(n): a(f"v_fma_f32 v{r}, v{r}, s{sT+6}, v{RES+r}")
        for rb in range(nrb):
            a(f"v_cvt_pk_bf16_f32 v{4*rb}, v{4*rb}, v{4*rb+1}")
            a(f"v_cvt_pk_bf16_f32 v{4*rb+1}, v{4*rb+2}, v{4*rb+3}")
            if mask: a(f"s_mov_b64 exec, {mask}")
            a(f"buffer_store_dwordx2 v[{4*rb}:{4*rb+1}], v{vOUT}, s[{R_OUT}:{R_OUT+3}], s{sT+4+rb} offen{OST}")
            if mask: a("s_mov_b64 exec, -1")
        ts_store(a)
        a("s_endpgm")
    fin(2)
    a.label(".K2_FIN1")
    a(f"s_mov_b32 s{sT+2}, 0x00ff00ff")
    a(f"s_mov_b32 s{sT+3}, 0x00ff00ff")
    fin(1, mask=f"s[{sT+2}:{sT+3}]")

    C = 64
    a.label(".K2_SLOW")
    srd(a, R_A, sDST, sDST+1, 640000)
    srd(a, R_B, sSRC, sSRC+1, 640000)
    srd(a, R_C, sEA, sEA+1, 1280000)
    a(f"s_mov_b32 s{sLAST}, 0")
    a(f"s_mov_b32 s{sBATCH}, 0")
    a(f"s_mov_b64 s[{sPEND}:{sPEND+1}], -1")
    a("s_waitcnt vmcnt(0) lgkmcnt(0)")
    a("s_barrier")
    a.label(".K2_SLOW_ZERO")
    a(f"s_lshl_b32 s{sT}, s{sW}, 6")
    a(f"v_add_u32 v48, s{sT}, v{LANE}")
    zero_fill(a, 48, 32, ".K2_ZF2")
    group_addrs(a, 32)
    a("s_waitcnt lgkmcnt(0)")
    a("s_barrier")
    a.label(".K2_SLOW_BATCH")
    a(f"s_lshl_b32 s{sT}, s{sW}, 6")
    a(f"s_add_u32 s{sT}, s{sT}, s{sBATCH}")
    a(f"v_add_u32 v48, s{sT}, v{LANE}")
    a("v_lshlrev_b32 v49, 2, v48")
    a("v_lshlrev_b32 v50, 3, v48")
    a(f"buffer_load_dword v51, v49, s[{R_A}:{R_A+3}], 0 offen")
    a(f"buffer_load_dword v52, v49, s[{R_B}:{R_B+3}], 0 offen")
    a(f"buffer_load_dwordx2 v[{C}:{C+1}], v50, s[{R_C}:{R_C+3}], 0 offen")
    a(f"s_mov_b32 s{sT+1}, 160000")
    a(f"v_cmp_gt_u32 s[{sVM}:{sVM+1}], s{sT+1}, v48")
    a("v_mov_b32 v56, 1")
    a("v_mov_b32 v57, 0x3f80")
    a("v_mov_b32 v58, 0")
    a(f"s_lshl_b32 s{sT}, s{sG}, 2")
    a(f"v_mov_b32 v40, s{sT}")
    a("s_waitcnt vmcnt(0)")
    a("v_mul_u32_u24 v53, 13108, v51")
    a("v_lshrrev_b32 v53, 16, v53")
    a("v_mad_i32_i24 v54, v53, -5, v51")
    a("v_lshlrev_b32 v55, 2, v53")
    a("v_and_b32 v55, 0x1c, v55")
    a("v_lshl_or_b32 v54, v54, 5, v55")
    a(f"v_lshl_or_b32 v{C+5}, v52, 8, v54")
    a("v_lshrrev_b32 v53, 3, v53")
    a(f"v_cmp_eq_u32 vcc, s{sB}, v53")
    a(f"s_and_b64 s[{sVM}:{sVM+1}], s[{sVM}:{sVM+1}], s[{sPEND}:{sPEND+1}]")
    a(f"s_and_b64 s[{sVM}:{sVM+1}], s[{sVM}:{sVM+1}], vcc")
    cand_issue(a, C, sVM, 56, 60)
    a("s_waitcnt lgkmcnt(0)")
    cand_commit(a, C, sVM, sCM, 60)
    a(f"s_andn2_b64 s[{sPEND}:{sPEND+1}], s[{sVM}:{sVM+1}], s[{sCM}:{sCM+1}]")
    cand_addr(a, C)
    a("s_waitcnt vmcnt(0)")
    cand_build(a, C, sCM, 57, 58)
    a("s_waitcnt lgkmcnt(0)")
    a("s_barrier")
    read_counts_issue(a, 32, 58)
    a(f"ds_read_b128 v[{BF}:{BF+3}], v{aSRC}")
    a("s_waitcnt lgkmcnt(0)")
    read_counts_use(a, 32)
    a("s_barrier")
    a(f"s_cmp_eq_u32 s{sOVER}, 0")
    a("s_cbranch_scc1 .K2_SLOW_ADV")
    a(f"s_cmp_eq_u32 s{sCNT}, 0")
    a("s_cbranch_scc1 .K2_SLOW_NEXT")
    issue_gather(a, BF)
    a("s_branch .K2_MAIN")
    a.label(".K2_SLOW_NEXT")
    a("s_waitcnt lgkmcnt(0)")
    a("s_barrier")
    a(f"s_cmp_gt_u32 s{sOVER}, 128")
    a("s_cbranch_scc1 .K2_SLOW_ZERO")
    a(f"s_add_u32 s{sBATCH}, s{sBATCH}, 1024")
    a(f"s_mov_b64 s[{sPEND}:{sPEND+1}], -1")
    a(f"s_cmp_lt_u32 s{sBATCH}, 160000")
    a("s_cbranch_scc1 .K2_SLOW_ZERO")
    a("s_branch .K2_SLOW_FIN")
    a.label(".K2_SLOW_ADV")
    a(f"s_add_u32 s{sBATCH}, s{sBATCH}, 1024")
    a(f"s_mov_b64 s[{sPEND}:{sPEND+1}], -1")
    a(f"s_cmp_lt_u32 s{sBATCH}, 160000")
    a("s_cbranch_scc1 .K2_SLOW_BATCH")
    a.label(".K2_SLOW_FIN")
    a(f"s_mov_b32 s{sLAST}, 1")
    a(f"s_mov_b32 s{sCNT}, 0")
    a("s_branch .K2_MAIN")
```

```python
import sys
sys.path.insert(0, 'gen')
from asmfw import *
import k1b as k1, k2b as k2
HDR = open('standalone__cheap_equivariant_egnn__graph.s.ref').read().split('; Override launch')[0]
def kernel_text(name, fn):
    a = Asm(); fn(a)
    t = f".globl {name}\n.p2align 8\n.type {name},@function\n{name}:\n" + a.text()
    return t, a.maxv, a.maxs
def build(path, **kw):
    t1, v1, s1 = kernel_text("egnn_prep_kernel", lambda a: k1.gen_k1(a, kw.get('ST', ''), kw.get('prof', False)))
    hdr = HDR + f"; @launch kernel=egnn_prep_kernel grid=({k1.K1_GRID},1,1) block=(512,1,1) lds={k1.K1_LDS}\n"
    body = t1; desc = kdesc("egnn_prep_kernel", v1, s1)
    t2, v2, s2 = kernel_text("egnn_main_kernel", lambda a: k2.gen_k2(a, **kw))
    hdr += f"; @launch kernel=egnn_main_kernel grid=({k2.K2_GRID},1,1) block=({k2.K2_BLOCK},1,1) lds={k2.K2_LDS}\n"
    body += t2; desc += kdesc("egnn_main_kernel", v2, s2)
    print("k1 vgprs", v1, "sgprs", s1, "k2 vgprs", v2, "sgprs", s2, file=sys.stderr)
    out = hdr + '.amdgcn_target "amdgcn-amd-amdhsa--gfx950"\n.text\n' + body + '.section .rodata,"a"\n' + desc
    open(path, 'w').write(out)
if __name__ == "__main__":
    kw = {}
    for x in sys.argv[2:]:
        if '=' in x:
            k, v = x.split('=', 1)
            kw[k] = {'0': False, '1': True}.get(v, v)
        else: kw[x] = True
    if 'ST' in kw: kw['ST'] = ' ' + kw['ST'].replace('+', ' ')
    if 'OST' in kw: kw['OST'] = ' ' + kw['OST'].replace('+', ' ')
    build(sys.argv[1], **kw)
```

```python
import re

TRANS = ("v_exp_f32", "v_log_f32", "v_rcp_f32", "v_rsq_f32", "v_sqrt_f32", "v_sin_f32", "v_cos_f32", "v_rcp_iflag_f32")

def _regs(tok):
    tok = tok.strip()
    tok = tok.lstrip('-').strip('|')
    m = re.fullmatch(r'([vsa])(\d+)', tok)
    if m: return [(m.group(1), int(m.group(2)))]
    m = re.fullmatch(r'([vsa])\[(\d+):(\d+)\]', tok)
    if m: return [(m.group(1), i) for i in range(int(m.group(2)), int(m.group(3)) + 1)]
    if tok == 'vcc': return [('s', 106), ('s', 107)]
    if tok == 'vcc_lo': return [('s', 106)]
    if tok == 'vcc_hi': return [('s', 107)]
    if tok == 'exec': return [('s', 126), ('s', 127)]
    if tok == 'exec_lo': return [('s', 126)]
    if tok == 'exec_hi': return [('s', 127)]
    if tok == 'm0': return [('s', 124)]
    return []

def split_ops(s):
    out = []; depth = 0; cur = ''
    for ch in s:
        if ch == '[': depth += 1
        if ch == ']': depth -= 1
        if ch == ',' and depth == 0:
            out.append(cur.strip()); cur = ''
        else: cur += ch
    if cur.strip(): out.append(cur.strip())
    return out

class Asm:
    def __init__(self):
        self.lines = []
        self.ev = []
        self.maxv = 0
        self.maxs = 0
        self.nlabel = 0
    def raw(self, t): self.lines.append(t)
    def comment(self, t): self.lines.append("    ; " + t)
    def newlabel(self, base="L"):
        self.nlabel += 1
        return f".{base}_{self.nlabel}"
    def label(self, l):
        self.lines.append(l + ":")
    def _age(self, n):
        for e in self.ev: e['age'] += n
        self.ev = [e for e in self.ev if e['age'] < 24]
    def nop(self, n):
        while n > 0:
            k = min(n, 8)
            self.lines.append(f"    s_nop {k-1}")
            self._age(k); n -= k
    def settle(self, extra_credit=0):
        need = 0
        for e in self.ev:
            need = max(need, e['maxneed'] - e['age'] - extra_credit)
        if need > 0: self.nop(need)
    def cond_begin(self):
        return [dict(e) for e in self.ev]
    def cond_end(self, snap):
        self.ev = self.ev + snap
    def __call__(self, text, nosettle=False):
        for t in text.strip().split('\n'):
            t = t.split(';')[0].strip()
            if not t: continue
            if t.endswith(':'):
                self.label(t[:-1]); continue
            self.ins(t, nosettle)
    def ins(self, t, nosettle=False):
        parts = t.split(None, 1)
        op = parts[0]
        rest = parts[1] if len(parts) > 1 else ''
        ops = split_ops(rest)
        mods = ''
        if ops:
            sp = ops[-1].split(None, 1)
            ops[-1] = sp[0]
            if len(sp) > 1: mods = sp[1]
        R = [_regs(o) for o in ops]
        for r in R:
            for k, n in r:
                if k == 'v': self.maxv = max(self.maxv, n + 1)
                if k == 's' and n < 102: self.maxs = max(self.maxs, n + 1)
        kind = None; dst = []; src = []
        opb = re.sub(r'_(e32|e64|sdwa|dpp)$', '', op)
        if op == 's_nop':
            self.lines.append("    " + t); self._age(int(ops[0], 0) + 1); return
        if op.startswith('v_mfma'):
            kind = 'mfma'; dst = R[0]; A = R[1]; B = R[2]; C = R[3]; src = A + B + C
            passes = 8 if '32x32' in op else 4
        elif op.startswith('v_cmp'):
            kind = 'valu'; dst = R[0]; src = sum(R[1:], [])
        elif op.startswith('v_readfirstlane') or op.startswith('v_readlane'):
            kind = 'valu'; dst = R[0]; src = sum(R[1:], [])
        elif op.startswith('v_'):
            kind = 'valu'; dst = R[0]; src = sum(R[1:], [])
            if opb in ('v_fmac_f32', 'v_dot2c_f32_bf16', 'v_pk_fmac_f16', 'v_writelane_b32') or 'permlane' in op or 'UNUSED_PRESERVE' in mods: src = src + dst
            if 'permlane' in op and 'swap' in op: dst = R[0] + R[1]
            if opb == 'v_cndmask_b32' and len(ops) == 3: src = src + [('s', 106), ('s', 107)]
            if '_co_' in op: raise Exception("avoid carry ops: " + t)
        elif op.startswith('ds_'):
            kind = 'ds'
            if 'read' in op or '_rtn' in op or 'bpermute' in op or 'permute' in op or 'swizzle' in op:
                dst = R[0]; src = sum(R[1:], [])
            else: src = sum(R, [])
        elif op.startswith('buffer_') or op.startswith('global_'):
            kind = 'vmem'
            islds = re.search(r'\blds\b', mods) is not None
            if 'load' in op and not islds: dst = R[0]; src = sum(R[1:], [])
            elif 'atomic' in op and re.search(r'\bsc0\b', mods): dst = R[0]; src = sum(R, [])
            else: src = sum(R, [])
            if islds: src = src + [('s', 124)]
        elif op.startswith('s_'):
            kind = 'salu'
            if op.startswith(('s_cmp', 's_waitcnt', 's_barrier', 's_branch', 's_cbranch', 's_endpgm', 's_setprio', 's_sleep', 's_bitcmp')):
                src = sum(R, [])
            else:
                dst = R[0] if R else []; src = sum(R[1:], [])
                if 'saveexec' in op: dst = dst + [('s', 126), ('s', 127)]
        else:
            raise Exception("unknown op " + t)
        if op.startswith(('s_branch', 's_cbranch', 's_setpc', 's_swappc')) and not nosettle:
            self.settle(extra_credit=1)
        sset = set(src); dset = set(dst)
        need = 0
        isdpp = 'dpp' in op or re.search(r'\b(row_|quad_perm|wave_)', mods) is not None
        for e in self.ev:
            k = e['kind']; rg = e['regs']; req = 0
            if k == 'valu_v':
                if kind == 'mfma' and rg & sset: req = 2
                if kind == 'valu':
                    if (op.startswith('v_readfirstlane') or op.startswith('v_readlane')) and rg & sset: req = max(req, 1)
                    if (isdpp or 'permlane' in op) and rg & sset: req = max(req, 2)
                if e.get('trans') and rg & sset and not (opb in TRANS): req = max(req, 1)
                if e.get('opsel') and rg & (sset | dset): req = max(req, 1)
                if e.get('dot') and rg & (sset | dset):
                    if not (opb == e['dot'] and not (rg & set(sum(R[1:3], [])))): req = max(req, 3)
            elif k == 'valu_s':
                if kind == 'valu' and rg & sset: req = 4 if ('readlane' in op or 'writelane' in op) else 2
                if kind == 'mfma' and rg & sset: req = 2
                if kind == 'vmem' and rg & sset: req = 5
            elif k == 'mfma_d':
                p = e['passes']; big = 12 if p == 8 else 8; mid = 10 if p == 8 else 6
                if kind == 'mfma':
                    if rg & set(A + B): req = big
                    if rg & set(C) or rg & dset:
                        exact = (set(C) == rg and passes == p and dset == rg)
                        if not exact: req = max(req, mid)
                elif rg & (sset | dset): req = big
            elif k == 'mfma_c':
                if kind == 'valu' and rg & dset: req = 7 if e['passes'] == 8 else 3
                if kind in ('ds', 'vmem') and rg & dset: req = 7 if e['passes'] == 8 else 3
            elif k == 'm0':
                if kind == 'vmem' and ('s', 124) in sset: req = 1
            elif k == 'wstore':
                if rg & dset: req = 2
            need = max(need, req - e['age'])
        if need > 0: self.nop(need)
        self.lines.append("    " + t)
        self._age(1)
        if kind == 'valu':
            vd = {r for r in dset if r[0] == 'v'}; sd = {r for r in dset if r[0] == 's'}
            if vd:
                e = dict(kind='valu_v', regs=vd, age=0, maxneed=2)
                if opb in TRANS: e['trans'] = True
                if 'sdwa' in op or 'op_sel' in mods or 'dst_sel' in mods: e['opsel'] = True
                if op.startswith('v_dot'): e['dot'] = opb; e['maxneed'] = 3
                self.ev.append(e)
            if sd: self.ev.append(dict(kind='valu_s', regs=sd, age=0, maxneed=5))
        elif kind == 'mfma':
            self.ev.append(dict(kind='mfma_d', regs=dset, age=0, passes=passes, maxneed=12 if passes == 8 else 8))
            if C: self.ev.append(dict(kind='mfma_c', regs=set(C), age=0, passes=passes, maxneed=7 if passes == 8 else 3))
        elif kind == 'salu':
            if ('s', 124) in dset: self.ev.append(dict(kind='m0', regs={('s', 124)}, age=0, maxneed=1))
        elif kind == 'vmem' and 'store' in op and ('x4' in op or 'x3' in op):
            self.ev.append(dict(kind='wstore', regs=set(R[0]), age=0, maxneed=2))
    def text(self): return "\n".join(self.lines) + "\n"

def v(n, c=1): return f"v{n}" if c == 1 else f"v[{n}:{n+c-1}]"
def s(n, c=1): return f"s{n}" if c == 1 else f"s[{n}:{n+c-1}]"

def kdesc(name, nv, ns):
    nv = (nv + 7) // 8 * 8
    return f""".p2align 6
.amdhsa_kernel {name}
  .amdhsa_next_free_vgpr {nv}
  .amdhsa_next_free_sgpr {max(ns, 16)}
  .amdhsa_accum_offset {nv}
  .amdhsa_group_segment_fixed_size 0
  .amdhsa_kernarg_size 88
  .amdhsa_user_sgpr_count 2
  .amdhsa_user_sgpr_kernarg_segment_ptr 1
  .amdhsa_system_sgpr_workgroup_id_x 1
.end_amdhsa_kernel
"""
```

```python
from asmfw import *

WS_BT   = 4096
WS_POSF = 0x278000
WS_W1F  = 0x2A0000
WS_WH1F = 0x2A8000
WS_WH2F = 0x2B0000
WS_WSM  = 0x2B8000
WS_WXK  = 0x2B8800
WS_KEY  = 0x300000
WS_EAS  = 0x410000
WS_AT   = 0x800000
WS_SIZE = 0xB00000
NLOG2E = 0xBFB8AA3B

K1_NBIN = 64
K1_NGEMM = 157
K1_GEMM0 = 64
K1_WP0 = K1_GEMM0 + K1_NGEMM
K1_WSM = K1_WP0 + 8
K1_GRID = K1_WSM + 1
K1_LDS = 81920

def srd(a, d, lo, hi, size):
    a(f"s_mov_b32 s{d}, s{lo}")
    a(f"s_mov_b32 s{d+1}, s{hi}")
    a(f"s_mov_b32 s{d+2}, {size}")
    a(f"s_mov_b32 s{d+3}, 0x00020000")

def gen_k1(a, ST="", prof=False):
    if prof:
        orig = a.ins
        def ins(t, nosettle=False):
            if t == "s_endpgm" and a.prof_on:
                orig("s_mov_b64 exec, -1")
                orig("s_waitcnt vmcnt(0)")
                orig("s_memrealtime s[92:93]")
                orig("s_waitcnt lgkmcnt(0)")
                orig("v_lshrrev_b32 v1, 6, v0")
                orig("v_lshlrev_b32 v1, 4, v1")
                orig("v_mov_b32 v2, s90")
                orig("v_mov_b32 v3, s94")
                orig("v_mov_b32 v4, s95")
                orig("v_mov_b32 v5, s92")
                orig("s_lshl_b32 s91, s2, 7")
                orig("s_add_u32 s91, s91, 0x780000")
                orig("s_mov_b64 exec, 1")
                orig("buffer_store_dwordx4 v[2:5], v1, s[36:39], s91 offen")
            orig(t, nosettle)
        a.ins = ins
        a.prof_on = False
        a("s_memrealtime s[90:91]")
    def ts(k):
        if prof:
            a("s_memrealtime s[92:93]")
            a("s_waitcnt lgkmcnt(0)")
            a(f"s_mov_b32 s{94+k}, s92")
    H, POS, EA, SRC, DST, WE, WX, WH, WS = 4, 6, 8, 10, 12, 14, 16, 18, 20
    a("s_load_dwordx16 s[4:19], s[0:1], 0")
    a("s_load_dwordx2 s[20:21], s[0:1], 80")
    a(f"s_cmp_lt_u32 s2, {K1_NBIN}")
    a("s_cbranch_scc1 .K1_BIN")
    a(f"s_cmp_lt_u32 s2, {K1_WP0}")
    a("s_cbranch_scc1 .K1_GEMM")
    a(f"s_cmp_lt_u32 s2, {K1_WSM}")
    a("s_cbranch_scc1 .K1_WPREP")
    a(f"s_cmp_eq_u32 s2, {K1_WSM}")
    a("s_cbranch_scc1 .K1_WSM")
    a("s_endpgm")

    a.prof_on = True
    a.label(".K1_BIN")
    LK, LE = 2048, 26624
    a("v_lshlrev_b32 v2, 2, v0")
    a("v_lshlrev_b32 v3, 3, v0")
    a("s_mul_i32 s40, s2, 10000")
    a("s_add_u32 s41, s40, 4096")
    a("s_add_u32 s42, s40, 8192")
    a("s_mul_i32 s43, s2, 20000")
    for j in range(1, 5): a(f"s_add_u32 s{43+j}, s43, {4096*j}")
    a("s_waitcnt lgkmcnt(0)")
    srd(a, 24, DST, DST+1, 640000)
    srd(a, 28, SRC, SRC+1, 640000)
    srd(a, 32, EA, EA+1, 1280000)
    srd(a, 36, WS, WS+1, WS_SIZE)
    DV, SV, EV, Q, CA, RK, KEY = 10, 15, 20, 30, 35, 40, 50
    for j in range(5):
        a(f"buffer_load_dword v{DV+j}, v2, s[24:27], s{40+j//2} offen offset:{2048*(j&1)}")
    for j in range(5):
        a(f"buffer_load_dword v{SV+j}, v2, s[28:31], s{40+j//2} offen offset:{2048*(j&1)}")
    for j in range(5):
        a(f"buffer_load_dwordx2 v[{EV+2*j}:{EV+2*j+1}], v3, s[32:35], s{43+j} offen")
    a("v_lshlrev_b32 v1, 4, v0")
    for r in range(4, 8): a(f"v_mov_b32 v{r}, -1")
    a("v_mov_b32 v8, 0")
    a("v_mov_b32 v9, 1")
    a("ds_write_b32 v2, v8")
    for j in range(3): a(f"ds_write_b128 v1, v[4:7] offset:{LK+8192*j}")
    a("s_movk_i32 s50, 452")
    a("v_cmp_gt_u32 s[48:49], s50, v0")
    a("v_cmp_gt_u32 s[84:85], 40, v0")
    a("s_movk_i32 s50, 80")
    a("v_cmp_gt_u32 s[86:87], s50, v0")
    a("v_lshrrev_b32 v4, 2, v0")
    a("v_and_b32 v5, 3, v0")
    a("v_lshlrev_b32 v5, 4, v5")
    a("v_lshl_add_u32 v6, v4, 12, v5")
    a("v_lshrrev_b32 v4, 3, v0")
    a("v_and_b32 v5, 7, v0")
    a("v_lshlrev_b32 v5, 4, v5")
    a("v_lshl_add_u32 v7, v4, 13, v5")
    a("s_lshl_b32 s76, s2, 6")
    a(f"s_add_u32 s76, s76, {WS_KEY}")
    a("s_add_u32 s77, s76, 524288")
    a("s_add_u32 s83, s76, 1048576")
    a("s_lshl_b32 s78, s2, 7")
    a(f"s_add_u32 s78, s78, {WS_EAS}")
    for j in range(1, 5): a(f"s_add_u32 s{78+j}, s78, {524288*j}")
    a("s_waitcnt lgkmcnt(0)")
    a("s_barrier")
    a("s_waitcnt vmcnt(10)")
    ts(0)
    for j in range(5):
        a(f"v_mul_u32_u24 v{Q+j}, 13108, v{DV+j}")
        a(f"v_lshrrev_b32 v{CA+j}, 17, v{Q+j}")
        a(f"v_and_b32 v{CA+j}, 0x3fc, v{CA+j}")
        if j == 4: a("s_mov_b64 exec, s[48:49]")
        a(f"ds_add_rtn_u32 v{RK+j}, v{CA+j}, v9")
        if j == 4: a("s_mov_b64 exec, -1")
    for j in range(5):
        a(f"v_lshrrev_b32 v{Q+j}, 16, v{Q+j}")
        a(f"v_mad_i32_i24 v55, v{Q+j}, -5, v{DV+j}")
        a(f"v_lshlrev_b32 v56, 2, v{Q+j}")
        a(f"v_and_b32 v56, 0x1c, v56")
        a(f"v_lshl_or_b32 v55, v55, 5, v56")
        a(f"v_lshl_or_b32 v{KEY+j}, v{CA+j}, 20, v55")
    a("s_waitcnt vmcnt(5)")
    for j in range(5):
        a(f"v_lshl_or_b32 v{KEY+j}, v{SV+j}, 8, v{KEY+j}")
    a("s_waitcnt vmcnt(0) lgkmcnt(0)")
    OK = 52
    OV = 62
    for j in range(5):
        a(f"v_cmp_gt_u32 s[{OK+2*j}:{OK+2*j+1}], 16, v{RK+j}")
        a(f"v_lshlrev_b32 v55, 2, v{RK+j}")
        a(f"v_lshl_add_u32 v55, v{CA+j}, 4, v55")
        a(f"v_lshlrev_b32 v56, 1, v55")
        if j == 4:
            a(f"s_andn2_b64 s[{OV+2*j}:{OV+2*j+1}], s[48:49], s[{OK+2*j}:{OK+2*j+1}]")
            a(f"s_and_b64 exec, s[48:49], s[{OK+2*j}:{OK+2*j+1}]")
        else:
            a(f"s_not_b64 s[{OV+2*j}:{OV+2*j+1}], s[{OK+2*j}:{OK+2*j+1}]")
            a(f"s_mov_b64 exec, s[{OK+2*j}:{OK+2*j+1}]")
        a(f"ds_write_b32 v55, v{KEY+j} offset:{LK}")
        a(f"ds_write_b64 v56, v[{EV+2*j}:{EV+2*j+1}] offset:{LE}")
        a("s_mov_b64 exec, -1")
    a(f"s_or_b64 s[72:73], s[{OV}:{OV+1}], s[{OV+2}:{OV+3}]")
    a(f"s_or_b64 s[74:75], s[{OV+4}:{OV+5}], s[{OV+6}:{OV+7}]")
    a(f"s_or_b64 s[72:73], s[72:73], s[{OV+8}:{OV+9}]")
    a(f"s_or_b64 s[72:73], s[72:73], s[74:75]")
    a("s_cbranch_scc0 .K1_BIN_NOOVF")
    a("s_movk_i32 s51, 1000")
    for j in range(5):
        a(f"v_lshrrev_b32 v{CA+j}, 7, v{CA+j}")
        a(f"v_lshl_add_u32 v{CA+j}, v{CA+j}, 3, s51")
        a(f"s_mov_b64 exec, s[{OV+2*j}:{OV+2*j+1}]")
        a(f"ds_add_rtn_u32 v{RK+j}, v{CA+j}, v9")
        a("s_mov_b64 exec, -1")
    a("v_mov_b32 v57, -2")
    a("s_waitcnt lgkmcnt(0)")
    for j in range(5):
        a(f"v_cmp_gt_u32 vcc, 31, v{RK+j}")
        a(f"v_min_u32 v55, 31, v{RK+j}")
        a(f"v_cndmask_b32 v{KEY+j}, v57, v{KEY+j}, vcc")
        a(f"v_lshlrev_b32 v55, 2, v55")
        a(f"v_lshl_add_u32 v55, v{CA+j}, 4, v55")
        a(f"v_lshlrev_b32 v56, 1, v55")
        a(f"s_mov_b64 exec, s[{OV+2*j}:{OV+2*j+1}]")
        a(f"ds_write_b32 v55, v{KEY+j} offset:{LK}")
        a(f"ds_write_b64 v56, v[{EV+2*j}:{EV+2*j+1}] offset:{LE}")
        a("s_mov_b64 exec, -1")
    a.label(".K1_BIN_NOOVF")
    a("s_waitcnt lgkmcnt(0)")
    a("s_barrier")
    ts(1)
    a("s_mov_b64 exec, s[86:87]")
    a(f"ds_read_b128 v[34:37], v1 offset:{LE+32768}")
    a(f"ds_read_b128 v[38:41], v1 offset:{LK+16384}")
    a("s_mov_b64 exec, -1")
    for j in range(2): a(f"ds_read_b128 v[{10+4*j}:{13+4*j}], v1 offset:{LK+8192*j}")
    for j in range(4): a(f"ds_read_b128 v[{18+4*j}:{21+4*j}], v1 offset:{LE+8192*j}")
    for j in range(6):
        a(f"s_waitcnt lgkmcnt({5-j})")
        a(f"buffer_store_dwordx4 v[{10+4*j}:{13+4*j}], v{6 if j < 2 else 7}, s[36:39], s{76+j} offen{ST}")
    a("s_mov_b64 exec, s[86:87]")
    a(f"buffer_store_dwordx4 v[34:37], v7, s[36:39], s82 offen{ST}")
    a("s_mov_b64 exec, s[84:85]")
    a(f"buffer_store_dwordx4 v[38:41], v6, s[36:39], s83 offen{ST}")
    a("s_endpgm")

    a.label(".K1_GEMM")
    a(f"s_sub_u32 s3, s2, {K1_GEMM0}")
    a("s_lshl_b32 s40, s3, 14")
    a("v_lshrrev_b32 v1, 6, v0")
    a("v_and_b32 v2, 63, v0")
    a("v_readfirstlane_b32 s41, v1")
    a("v_lshrrev_b32 v3, 4, v2")
    a("v_and_b32 v4, 15, v2")
    a("v_lshl_add_u32 v5, v1, 3, v3")
    a("v_and_b32 v6, 15, v5")
    a("v_xor_b32 v6, v6, v4")
    a("v_lshlrev_b32 v6, 4, v6")
    a("v_lshl_add_u32 v6, v5, 8, v6")
    a("v_xor_b32 v7, 64, v6")
    a("v_lshl_add_u32 v8, v1, 4, v3")
    a("v_lshlrev_b32 v9, 1, v3")
    a("v_xor_b32 v9, v9, v4")
    a("v_lshlrev_b32 v9, 4, v9")
    a("v_lshl_add_u32 v9, v8, 8, v9")
    a("v_xor_b32 v10, 128, v9")
    a("s_lshl_b32 s42, s41, 11")
    a("s_lshl_b32 s43, s41, 12")
    a("s_add_u32 s43, s43, 16384")
    a("s_waitcnt lgkmcnt(0)")
    srd(a, 24, H, H+1, 2560000)
    srd(a, 28, WE, WE+1, 66816)
    srd(a, 32, POS, POS+1, 60000)
    srd(a, 36, WS, WS+1, WS_SIZE)
    a("s_mov_b32 s44, 32768")
    a("s_lshl_b32 s45, s3, 6")
    a("v_add_u32 v11, s45, v2")
    a("v_lshlrev_b32 v124, 4, v11")
    a("s_cmp_lg_u32 s41, 0")
    a("s_cbranch_scc1 .K1_G_NOPOS")
    a("v_mul_u32_u24 v12, 6, v11")
    a("buffer_load_ushort v120, v12, s[32:35], 0 offen")
    a("buffer_load_ushort v121, v12, s[32:35], 0 offen offset:2")
    a("buffer_load_ushort v122, v12, s[32:35], 0 offen offset:4")
    a("v_mov_b32 v123, 0")
    a.label(".K1_G_NOPOS")
    a("s_mov_b32 m0, s43")
    for j in range(4):
        a(f"buffer_load_dwordx4 v{9 if j < 2 else 10}, s[28:31], s44 offen offset:{1024*j} lds")
    a("s_mov_b32 m0, s42")
    a("buffer_load_dwordx4 v6, s[24:27], s40 offen lds")
    a("buffer_load_dwordx4 v7, s[24:27], s40 offen offset:1024 lds")
    a("s_add_u32 m0, s43, 32768")
    for j in range(4):
        a(f"buffer_load_dwordx4 v{9 if j < 2 else 10}, s[28:31], 0 offen offset:{1024*j} lds")
    a("v_and_b32 v11, 3, v1")
    a("v_lshrrev_b32 v12, 2, v1")
    a("v_lshl_add_u32 v13, v11, 4, v4")
    a("v_xor_b32 v14, v3, v4")
    a("v_lshlrev_b32 v14, 4, v14")
    a("v_lshl_add_u32 v14, v13, 8, v14")
    for ks in range(1, 4): a(f"v_xor_b32 v{14+ks}, {64*ks}, v14")
    a("v_lshrrev_b32 v18, 2, v4")
    a("v_and_b32 v19, 1, v3")
    a("v_lshl_or_b32 v19, v19, 2, v18")
    a("v_lshlrev_b32 v20, 2, v12")
    a("v_xor_b32 v19, v19, v20")
    a("v_lshlrev_b32 v19, 5, v19")
    a("v_and_b32 v20, 3, v4")
    a("v_lshl_add_u32 v19, v20, 3, v19")
    a("v_lshl_add_u32 v18, v3, 3, v18")
    a("v_lshl_add_u32 v19, v18, 8, v19")
    for cb in range(1, 4): a(f"v_xor_b32 v{19+cb}, {32*cb}, v19")
    a("v_lshlrev_b32 v23, 2, v3")
    a("v_lshl_add_u32 v23, v11, 4, v23")
    a("v_lshlrev_b32 v23, 8, v23")
    a("v_lshl_add_u32 v23, v12, 7, v23")
    a("v_lshl_add_u32 v23, v4, 3, v23")
    a(f"s_add_u32 s45, s40, {WS_BT}")
    a(f"s_add_u32 s47, s40, {WS_AT}")
    a(f"s_mov_b32 s46, {NLOG2E}")
    a(f"s_mov_b32 s48, {WS_POSF}")
    a("s_waitcnt vmcnt(4)")
    ts(0)
    a("s_barrier")
    ts(1)
    AF = 24
    BF = 40
    D = 104
    def rdB(base):
        for ks in range(4):
            for cb in range(4):
                b = BF + 16*ks + 4*cb
                for hf in range(2):
                    a(f"ds_read_b64_tr_b16 v[{b+2*hf}:{b+2*hf+1}], v{19+cb} offset:{base + ks*8192 + hf*1024}")
    def mm():
        for ks in range(4):
            for cb in range(4):
                n_after = (3-ks)*8 + (3-cb)*2
                a(f"s_waitcnt lgkmcnt({min(n_after,15)})")
                b = BF + 16*ks + 4*cb
                c = "0" if ks == 0 else f"v[{D+4*cb}:{D+4*cb+3}]"
                a(f"v_mfma_f32_16x16x32_bf16 v[{D+4*cb}:{D+4*cb+3}], v[{AF+4*ks}:{AF+4*ks+3}], v[{b}:{b+3}], {c}")
    def fin(so, O):
        for cb in range(4):
            for r in range(4): a(f"v_mul_f32 v{D+4*cb+r}, s46, v{D+4*cb+r}")
        for r in range(4):
            a(f"v_cvt_pk_bf16_f32 v{O+2*r}, v{D+r}, v{D+4+r}")
            a(f"v_cvt_pk_bf16_f32 v{O+1+2*r}, v{D+8+r}, v{D+12+r}")
            a(f"buffer_store_dwordx2 v[{O+2*r}:{O+1+2*r}], v23, s[36:39], s{so} offen offset:{256*r}{ST}")
    for ks in range(4): a(f"ds_read_b128 v[{AF+4*ks}:{AF+4*ks+3}], v{14+ks}")
    rdB(16384)
    mm()
    a("s_waitcnt vmcnt(0)")
    a("s_barrier")
    for cb in range(4): a(f"v_add_u32 v{19+cb}, 32768, v{19+cb}")
    rdB(16384)
    fin(45, 128)
    a("s_cmp_lg_u32 s41, 0")
    a("s_cbranch_scc1 .K1_G_NOPOS2")
    for r in range(3): a(f"v_lshlrev_b32 v{120+r}, 16, v{120+r}")
    a(f"buffer_store_dwordx4 v[120:123], v124, s[36:39], s48 offen{ST}")
    a.label(".K1_G_NOPOS2")
    mm()
    fin(47, 136)
    a("s_endpgm")

    a.label(".K1_WPREP")
    a(f"s_sub_u32 s3, s2, {K1_WP0}")
    a("s_and_b32 s40, s3, 3")
    a("s_lshr_b32 s41, s3, 2")
    a("s_lshl_b32 s40, s40, 9")
    a("v_add_u32 v1, s40, v0")
    a("v_lshrrev_b32 v2, 8, v1")
    a("v_bfe_u32 v3, v1, 6, 2")
    a("v_bfe_u32 v4, v1, 4, 2")
    a("v_and_b32 v5, 15, v1")
    a("v_lshl_add_u32 v6, v2, 4, v5")
    a("v_lshlrev_b32 v7, 2, v3")
    a("v_add_u32 v7, v7, v4")
    a("v_lshlrev_b32 v7, 11, v7")
    a("v_lshlrev_b32 v16, 4, v1")
    a("s_waitcnt lgkmcnt(0)")
    srd(a, 28, WE, WE+1, 66816)
    srd(a, 32, WH, WH+1, 65536)
    srd(a, 36, WS, WS+1, WS_SIZE)
    a("s_cmp_eq_u32 s41, 1")
    a("s_cbranch_scc1 .K1_WP2")
    def ld8(srdn, addr, offs, soffs=None):
        for t in range(8):
            so = "0" if soffs is None else f"s{soffs+t}"
            a(f"buffer_load_ushort v{20+t}, v{addr}, s[{srdn}:{srdn+3}], {so} offen offset:{offs[t]}")
    def st(off):
        a(f"s_mov_b32 s42, {off}")
        a("s_waitcnt vmcnt(0)")
        for t in range(4): a(f"v_lshl_or_b32 v{10+t}, v{21+2*t}, 16, v{20+2*t}")
        a(f"buffer_store_dwordx4 v[10:13], v16, s[36:39], s42 offen{ST}")
        a("s_endpgm")
    a("v_lshl_add_u32 v8, v6, 1, v7")
    ld8(32, 8, [256*t for t in range(8)])
    st(WS_WH1F)
    a.label(".K1_WP2")
    a("v_lshrrev_b32 v8, 1, v3")
    a("v_lshlrev_b32 v8, 6, v8")
    a("v_and_b32 v9, 1, v3")
    a("v_lshl_add_u32 v8, v9, 3, v8")
    a("v_and_b32 v9, 1, v4")
    a("v_lshl_add_u32 v8, v9, 2, v8")
    a("v_lshrrev_b32 v9, 1, v4")
    a("v_add_u32 v8, v8, v9")
    a("v_lshlrev_b32 v8, 8, v8")
    a("v_lshl_add_u32 v8, v6, 1, v8")
    for t in range(8): a(f"s_mov_b32 s{44+t}, {32768 + 4096*(t&3)}")
    ld8(32, 8, [512*(t>>2) for t in range(8)], soffs=44)
    st(WS_WH2F)

    a.label(".K1_WSM")
    a("v_lshrrev_b32 v1, 7, v0")
    a("v_readfirstlane_b32 s3, v1")
    a("v_and_b32 v6, 127, v0")
    a("s_waitcnt lgkmcnt(0)")
    srd(a, 28, WE, WE+1, 66816)
    srd(a, 32, WX, WX+1, 256)
    srd(a, 36, WS, WS+1, WS_SIZE)
    a("s_cmp_eq_u32 s3, 1")
    a("s_cbranch_scc1 .K1_WXK")
    a("s_cmp_lg_u32 s3, 0")
    a("s_cbranch_scc1 .K1_END")
    a("v_and_b32 v8, 64, v6")
    a("v_and_b32 v9, 3, v6")
    a("v_lshl_add_u32 v8, v9, 4, v8")
    a("v_bfe_u32 v9, v6, 2, 4")
    a("v_add_u32 v8, v8, v9")
    a("v_lshlrev_b32 v8, 1, v8")
    a("s_mov_b32 s40, 65536")
    for t in range(5): a(f"buffer_load_ushort v{10+t}, v8, s[28:31], s40 offen offset:{256*t}")
    a(f"s_mov_b32 s41, {NLOG2E}")
    a(f"s_mov_b32 s42, {WS_WSM}")
    a("v_lshlrev_b32 v16, 1, v6")
    a("s_waitcnt vmcnt(0)")
    for t in range(5):
        a(f"v_lshlrev_b32 v{10+t}, 16, v{10+t}")
        a(f"v_mul_f32 v{10+t}, s41, v{10+t}")
    a("v_cvt_pk_bf16_f32 v20, v11, v12")
    a("v_cvt_pk_bf16_f32 v21, v13, v14")
    a("v_cvt_pk_bf16_f32 v22, v10, v10")
    a("v_lshlrev_b32 v17, 16, v22")
    a("v_sub_f32 v17, v10, v17")
    a("v_cvt_pk_bf16_f32 v22, v10, v17")
    a("v_mov_b32 v23, 0")
    for t in range(4):
        a(f"buffer_store_short v{20+t}, v16, s[36:39], s42 offen offset:{512*t}{ST}")
        a(f"buffer_store_short_d16_hi v{20+t}, v16, s[36:39], s42 offen offset:{512*t+256}{ST}")
    a("s_endpgm")
    a.label(".K1_WXK")
    a("v_and_b32 v8, 64, v6")
    a("v_and_b32 v9, 3, v6")
    a("v_lshl_add_u32 v8, v9, 4, v8")
    a("v_bfe_u32 v9, v6, 5, 1")
    a("v_lshl_add_u32 v8, v9, 3, v8")
    a("v_bfe_u32 v9, v6, 2, 2")
    a("v_lshl_add_u32 v8, v9, 1, v8")
    a("v_bfe_u32 v9, v6, 4, 1")
    a("v_add_u32 v8, v8, v9")
    a("v_lshlrev_b32 v8, 1, v8")
    a("buffer_load_ushort v10, v8, s[32:35], 0 offen")
    a(f"s_mov_b32 s42, {WS_WXK}")
    a("v_lshlrev_b32 v16, 1, v6")
    a("s_waitcnt vmcnt(0)")
    a(f"buffer_store_short v10, v16, s[36:39], s42 offen{ST}")
    a.label(".K1_END")
    a("s_endpgm")
```

```python
from asmfw import *
from k1c import *

K2_GRID = 250
K2_BLOCK = 512
L_CNT  = 0
L_SRC  = 64
L_POS  = 4160
L_R    = 5184
RT     = 2048
L_RING = L_R + 65536
RINGH  = 4224
RINGW  = 2 * RINGH
L_HT   = (L_RING + 8 * RINGW + 255) // 256 * 256
MS     = 272
L_AT   = L_HT + 40 * MS
TS     = 256
L_WSM  = L_AT + 40 * TS
L_WXK  = L_WSM + 2048
L_ZERO = L_WSM + 1536
K2_LDS = L_WSM + 3072
PADSRC = 0x40000000
NLN2 = 0xBF317218

ACC, T, E, X, S, BF = 0, 64, 128, 160, 164, 172
SEL0, SEL1, ONE, BX = 188, 192, 196, 200
aX, aS, aSRC, aB, cof, LANE, vOUT, vZ = 216, 217, 218, 219, 220, 221, 222, 223
VO, H1, WH2 = 224, 228, 240

sH, sPOS, sEA, sSRC, sDST = 4, 6, 8, 10, 12
sOUT, sWS = 20, 22
R_WS, R_H, R_BT, R_OUT, R_A, R_B, R_C = 24, 28, 32, 36, 44, 48, 52
sW, sG, sCNT, sREM, sLAST, sSLOW = 56, 58, 59, 60, 61, 62
sDMA = 64
sRING = 68
sRINGB = 57
sT = 70
sCM = 80
sPF, sPFO, sOVE = 88, 89, 90
sK128, sL2E = 91, 92
sBATCH, sOVER = 96, 97
sPEND = 98
sDMB = 14
sB = 2
WSR = f"s[{R_WS}:{R_WS+3}]"

def mfma32(a, d, x, y, c):
    cs = "0" if c is None else f"v[{c}:{c+15}]"
    a(f"v_mfma_f32_32x32x16_bf16 v[{d}:{d+15}], v[{x}:{x+3}], v[{y}:{y+3}], {cs}")
def mfma16(a, d, x, y, c):
    cs = "0" if c is None else f"v[{c}:{c+3}]"
    a(f"v_mfma_f32_16x16x32_bf16 v[{d}:{d+3}], v[{x}:{x+3}], v[{y}:{y+3}], {cs}")

def init_small(a, tid8, t):
    a(f"v_mov_b32 v{t}, {PADSRC}")
    a(f"v_mov_b32 v{t+1}, {PADSRC}")
    a(f"v_and_b32 v{t+2}, 56, v{tid8}")
    a(f"v_mov_b32 v{t+3}, 0")
    a(f"ds_write_b64 v{tid8}, v[{t}:{t+1}] offset:{L_SRC}")
    a(f"ds_write2_b32 v{t+2}, v{t+3}, v{t+3} offset0:0 offset1:1")
def zero_rec(a, tid8, t):
    a(f"v_lshlrev_b32 v{t+4}, 1, v{tid8}")
    for r in range(4): a(f"v_mov_b32 v{t+r}, 0")
    for j in range(8): a(f"ds_write_b128 v{t+4}, v[{t}:{t+3}] offset:{L_R+8192*j}")

class Cand:
    def __init__(self, r, k):
        if k == 0: self.EA, self.D2, self.RK, self.CN, self.I, self.PS, self.S256, self.PD = r, r+2, r+5, r+6, r+7, r+8, r+11, r+12
        else:      self.EA, self.D2, self.RK, self.PS, self.CN, self.PD, self.I, self.S256 = r+2, r+4, r+15, r+16, r+19, r+20, r+23, r+24
def cand_atomic(a, c, key, vm, one):
    a(f"v_and_b32 v{c.CN}, 0x1c, v{key}")
    a(f"s_mov_b64 exec, s[{vm}:{vm+1}]")
    a(f"ds_add_rtn_u32 v{c.RK}, v{c.CN}, v{one} offset:{L_CNT}")
    a("s_mov_b64 exec, -1")
def cand_loads(a, c, key, t, pdglobal=False):
    a(f"v_and_b32 v{c.S256}, 0x3fff00, v{key}")
    a(f"v_bfe_u32 v{c.I}, v{key}, 5, 3")
    a(f"v_lshrrev_b32 v{t}, 4, v{c.S256}")
    a(f"v_mul_u32_u24 v{c.PD}, 20, v{c.CN}")
    a(f"buffer_load_dwordx3 v[{c.PS}:{c.PS+2}], v{t}, {WSR}, s{sPF} offen")
    a(f"v_lshl_add_u32 v{c.PD}, v{c.I}, 4, v{c.PD}")
    if pdglobal: a(f"buffer_load_dwordx3 v[{c.PD}:{c.PD+2}], v{c.PD}, {WSR}, s{sPFO} offen")
def cand_pd(a, c):
    a(f"ds_read_b96 v[{c.PD}:{c.PD+2}], v{c.PD} offset:{L_POS}")
def cand_commit(a, c, m, t):
    a(f"v_cmp_gt_u32 vcc, s{sK128}, v{c.RK}")
    a(f"v_lshl_add_u32 v{c.CN}, v{c.CN}, 5, v{c.RK}")
    a(f"v_lshlrev_b32 v{t}, 2, v{c.CN}")
    a(f"s_and_b64 s[{m}:{m+1}], vcc, s[{m}:{m+1}]")
    a(f"s_mov_b64 exec, s[{m}:{m+1}]")
    a(f"ds_write_b32 v{t}, v{c.S256} offset:{L_SRC}")
    a("s_mov_b64 exec, -1")
def cand_build(a, c, cm, onebf):
    EA, D2, RK, PS, RD, PD, I = c.EA, c.D2, c.RK, c.PS, c.CN, c.PD, c.I
    a(f"v_lshlrev_b32 v{RD}, 6, v{RD}")
    for k in range(3): a(f"v_sub_f32 v{PS+k}, v{PD+k}, v{PS+k}")
    a(f"v_lshl_add_u32 v{RK}, v{I}, 1, v{RD}")
    a(f"v_cvt_pk_bf16_f32 v{PD}, 1.0, v{PS}")
    a(f"v_cvt_pk_bf16_f32 v{PD+1}, v{PS+1}, v{PS+2}")
    a(f"v_lshl_add_u32 v{I}, v{I}, 3, v{RD}")
    a(f"v_dot2_f32_bf16 v{PS}, v{PD}, v{PD}, -1.0")
    a(f"s_mov_b64 exec, s[{cm}:{cm+1}]")
    a(f"ds_write_b16 v{RK}, v{onebf} offset:{L_R+12}")
    a(f"ds_write_b64 v{I}, v[{PD}:{PD+1}] offset:{L_R+24}")
    a(f"v_dot2_f32_bf16 v{PS}, v{PD+1}, v{PD+1}, v{PS}")
    a(f"v_cvt_pk_bf16_f32 v{D2}, v{PS}, v{PS}")
    a(f"ds_write_b96 v{RD}, v[{EA}:{EA+2}] offset:{L_R}")
    a("s_mov_b64 exec, -1")

def vo_add(a):
    for k in range(4): a(f"v_add_u32 v{VO+k}, v{VO+k}, v{cof}")
def gather(a, half):
    a(f"s_mov_b32 m0, s{sRINGB if half else sRING}")
    so = sDMB if half else sDMA
    for k in range(4):
        a(f"buffer_load_dwordx4 v{VO+k}, s[{R_BT}:{R_BT+3}], s{so+k} offen offset:{1056*k} lds")

def rdS(a):
    for k in range(4): a(f"ds_read_b64_tr_b16 v[{S+2*k}:{S+2*k+1}], v{aS} offset:{512*k}")
def rdX(a, off):
    a(f"ds_read_b128 v[{X}:{X+3}], v{aX} offset:{off}")
def rdBF(a, u, buf):
    b = BF + 8 * buf
    off = (u >> 1) * RINGH + (u & 1) * 64
    a(f"ds_read_b128 v[{b}:{b+3}], v{aB} offset:{off}")
    a(f"ds_read_b128 v[{b+4}:{b+7}], v{aB} offset:{off+32}")
def heads(a, u, buf):
    Th = T + 16 * u; b = BF + 8 * buf
    return [lambda: mfma32(a, Th, X, BX + 4 * u, None),
            lambda: mfma32(a, Th, b, SEL0, Th),
            lambda: mfma32(a, Th, b + 4, SEL1, Th)]

def stage(a, u, nexp, nq, nseg, do_heads, ev1=None, ev2=None, post=None, pre=None):
    Tn, Tc, Tp = T + 16 * ((u + 1) % 4), T + 16 * u, T + 16 * ((u - 1) % 4)
    En, Ec = E + 16 * ((u + 1) % 2), E + 16 * (u % 2)
    Ap = ACC + 16 * ((u - 1) % 4)
    if pre: a(pre)
    n = 4 * nexp
    ev = {}
    def at(d, i, f, n): d.setdefault(min(i, n), []).append(f)
    at(ev, 0, lambda: mfma32(a, Ap, Tp, S, Ap), n)
    if nseg > 1: at(ev, 4, lambda: mfma32(a, Ap, Tp + 4, S + 4, Ap), n)
    for i, f in (ev1 or []): at(ev, i, f, n)
    for r in range(n + 1):
        for f in ev.get(r, []): f()
        if r < n: a(f"v_exp_f32 v{En+r}, v{Tn+r}")
    if n: mfma32(a, En, ONE, ONE, En)
    n = 4 * nq
    ev = {}
    if do_heads:
        hs = heads(a, (u + 2) % 4, u % 2)
        for i, f in zip((1, 5, 9), hs): at(ev, i, f, n)
    for i, f in (ev2 or []): at(ev, i, f, n)
    for r in range(n + 1):
        for f in ev.get(r, []): f()
        if r < n: a(f"v_rcp_f32 v{Ec+r}, v{Ec+r}")
    for j in range(2 * nq): a(f"v_pk_mul_f32 v[{Ec+2*j}:{Ec+2*j+1}], v[{Ec+2*j}:{Ec+2*j+1}], v[{Tc+2*j}:{Tc+2*j+1}]")
    for j in range(2 * nq): a(f"v_cvt_pk_bf16_f32 v{Tc+j}, v{Ec+2*j}, v{Ec+2*j+1}")
    if nq & 1:
        a(f"v_mov_b32 v{Tc+2*nq}, 0")
        a(f"v_mov_b32 v{Tc+2*nq+1}, 0")
    if post: post()

def lane_addrs(a, t):
    a(f"v_and_b32 v{t}, 31, v{LANE}")
    a(f"v_lshrrev_b32 v{t+3}, 5, v{LANE}")
    a(f"v_lshlrev_b32 v{t}, 6, v{t}")
    a(f"v_lshl_add_u32 v{t}, v{t+3}, 4, v{t}")
    a(f"v_bfe_u32 v{t+1}, v{LANE}, 2, 2")
    a(f"v_lshl_add_u32 v{t+1}, v{t+3}, 2, v{t+1}")
    a(f"v_lshlrev_b32 v{t+1}, 6, v{t+1}")
    a(f"v_and_b32 v{t+3}, 3, v{LANE}")
    a(f"v_bfe_u32 v{t+4}, v{LANE}, 4, 1")
    a(f"v_lshl_or_b32 v{t+3}, v{t+4}, 2, v{t+3}")
    a(f"v_min_u32 v{t+3}, 4, v{t+3}")
    a(f"v_lshl_add_u32 v{t+1}, v{t+3}, 3, v{t+1}")
    a(f"v_lshrrev_b32 v{t+2}, 3, v{LANE}")
    a(f"v_lshlrev_b32 v{t+2}, 4, v{t+2}")
def group_addrs(a, t):
    a(f"s_lshl_b32 s{sT}, s{sG}, 9")
    a(f"s_add_u32 s{sT}, s{sT}, {L_SRC}")
    a(f"v_add_u32 v{aSRC}, s{sT}, v{t+2}")
    a(f"s_lshl_b32 s{sT}, s{sG}, 13")
    a(f"s_add_u32 s{sT}, s{sT}, {L_R}")
    a(f"s_add_u32 s{sT+1}, s{sT}, 24")
    a(f"v_add_u32 v{aX}, s{sT}, v{t}")
    a(f"v_add_u32 v{aS}, s{sT+1}, v{t+1}")

TSREG = [3, 18, 19, 63, 69, 40, 41, 42, 43, 94, 95, 100]
PROF = False
TSMAP = None
def ts(a, k):
    if not PROF: return
    if TSMAP is not None:
        if k not in TSMAP and k != 11: return
        if k != 11: k = TSMAP[k]
    elif not isinstance(k, int): return
    a("s_memrealtime s[100:101]")
    a("s_waitcnt lgkmcnt(0)")
    if k != 11: a(f"s_mov_b32 s{TSREG[k]}, s100")
def ts_store(a):
    if not PROF: return
    ts(a, 11)
    a("s_mov_b64 exec, 1")
    for k in range(12): a(f"v_mov_b32 v{40+k}, s{TSREG[k]}")
    a(f"v_mov_b32 v52, s{sCNT}")
    a(f"s_lshl_b32 s{sT+8}, s{sB}, 4")
    a(f"s_add_u32 s{sT+8}, s{sT+8}, s{sW}")
    a(f"s_lshl_b32 s{sT+8}, s{sT+8}, 6")
    a(f"s_add_u32 s{sT+8}, s{sT+8}, 0x700000")
    a("v_mov_b32 v56, 0")
    for k in range(3): a(f"buffer_store_dwordx4 v[{40+4*k}:{43+4*k}], v56, {WSR}, s{sT+8} offen offset:{16*k}")
    a(f"buffer_store_dword v52, v56, {WSR}, s{sT+8} offen offset:48")
    a("s_mov_b64 exec, -1")

def gen_k2(a, **kw):
    global PROF, TSMAP
    if kw.get('prof2'): TSMAP = {1:1, 2:2, 'dma':3, 'zr':4, 'wf1':5, 'wf3':6, 'prek':7, 3:8, 'com':9, 4:10}
    PROF = kw.get('prof', False)
    OST = kw.get('OST', '')
    PRIO = kw.get('prio', False)
    TOUCH = int(kw.get('touch', 0))
    NT = 1 if TOUCH else 0
    if PROF:
        a("s_memrealtime s[100:101]")
    a("s_load_dwordx16 s[4:19], s[0:1], 0")
    a("s_load_dwordx2 s[20:21], s[0:1], 64")
    a("s_load_dwordx2 s[22:23], s[0:1], 80")
    a(f"s_cmp_lt_u32 s2, {K2_GRID}")
    a("s_cbranch_scc1 .K2_GO")
    a("s_endpgm")
    a.label(".K2_GO")
    WF, HF = 0, 64
    PA, PB = 128, 32
    A0, A1, B0, B1 = Cand(PA, 0), Cand(PA, 1), Cand(PB, 0), Cand(PB, 1)
    KA, KB, KC = 154, 58, 60
    T8, T16, L16, Q, N = 160, 161, 162, 163, 164
    a(f"v_lshlrev_b32 v{T8}, 3, v0")
    a(f"v_lshrrev_b32 v165, 6, v0")
    a(f"v_lshlrev_b32 v{T16}, 4, v0")
    a(f"v_readfirstlane_b32 s{sW}, v165")
    a(f"v_and_b32 v{LANE}, 63, v0")
    a(f"s_lshl_b32 s{sT}, s{sB}, 12")
    a(f"s_add_u32 s{sT}, s{sT}, {WS_KEY}")
    a(f"s_lshr_b32 s{sT+1}, s{sB}, 5")
    a(f"s_lshl_b32 s{sOVE}, s{sT+1}, 14")
    a(f"s_add_u32 s{sOVE}, s{sOVE}, {WS_EAS + 250*8192}")
    a(f"s_lshl_b32 s{sT+1}, s{sT+1}, 13")
    a(f"s_add_u32 s{sT+1}, s{sT+1}, {WS_KEY + 250*4096}")
    a(f"s_add_u32 s{sBATCH}, s{sT+1}, 4096")
    a(f"s_lshl_b32 s{sT+2}, s{sB}, 13")
    a(f"s_add_u32 s{sT+2}, s{sT+2}, {WS_EAS}")
    init_small(a, T8, 166)
    a(f"v_lshrrev_b32 v{Q}, 4, v{LANE}")
    a(f"v_and_b32 v{N}, 15, v{LANE}")
    a(f"v_lshlrev_b32 v{L16}, 4, v{LANE}")
    a(f"s_and_b32 s{sT+3}, s{sW}, 3")
    a(f"s_lshl_b32 s{sT+3}, s{sT+3}, 2")
    a(f"v_add_u32 v165, s{sT+3}, v{Q}")
    a(f"v_xor_b32 v165, v165, v{N}")
    a("v_lshlrev_b32 v165, 4, v165")
    a(f"v_lshl_add_u32 v165, v{Q}, 8, v165")
    a(f"s_lshl_b32 s{sT+4}, s{sW}, 10")
    a(f"s_mul_i32 s{sT+9}, s{sB}, 10240")
    a(f"s_add_u32 s{sT+3}, s{sT+9}, s{sT+4}")
    a(f"s_add_u32 s{sT+5}, s{sT+3}, {WS_AT}")
    a(f"s_mul_i32 s{sPFO}, s{sB}, 640")
    a(f"s_add_u32 s{sPFO}, s{sPFO}, {WS_POSF}")
    a(f"s_add_u32 s{sT+6}, s{sT+5}, {8192-2048}")
    a(f"s_add_u32 s{sT+7}, s{sT+4}, {WS_WSM-4096}")
    a(f"s_cmp_lt_u32 s{sW}, 4")
    a(f"s_cselect_b32 s{sT+6}, s{sT+6}, s{sT+7}")
    a(f"s_add_u32 s{sT+7}, s{sT+4}, {L_AT+8192-2048}")
    a(f"s_cmp_eq_u32 s{sW}, 7")
    a(f"s_cselect_b32 s{sT+6}, s{sPFO}, s{sT+6}")
    a(f"s_cselect_b32 s{sT+7}, {L_POS}, s{sT+7}")
    a(f"s_lshl_b32 s{sT+8}, s{sW}, 12")
    a(f"s_add_u32 s{sT+8}, s{sT+8}, {WS_WH1F}")
    a(f"s_add_u32 s{sREM}, s{sT+8}, 32768")
    a("s_waitcnt lgkmcnt(0)")
    if PROF: a(f"s_mov_b32 s{TSREG[0]}, s100")
    ts(a, 1)
    srd(a, R_WS, sWS, sWS+1, WS_SIZE)
    a(f"buffer_load_dwordx2 v[{KA}:{KA+1}], v{T8}, {WSR}, s{sT} offen")
    a(f"buffer_load_dwordx2 v[{KB}:{KB+1}], v{T8}, {WSR}, s{sT+1} offen")
    a("s_barrier")
    ts(a, 2)
    srd(a, R_H, sH, sH+1, 2560000)
    a(f"s_add_u32 m0, s{sT+4}, {L_AT}")
    a(f"buffer_load_dwordx4 v{L16}, {WSR}, s{sT+5} offen lds")
    a(f"s_cmp_gt_u32 s{sW}, 1")
    a("s_cbranch_scc1 .K2_DW")
    a(f"s_add_u32 m0, s{sT+4}, {L_HT+8192}")
    a(f"s_add_u32 s{sT+7}, s{sT+3}, 8192")
    a(f"buffer_load_dwordx4 v165, s[{R_H}:{R_H+3}], s{sT+7} offen lds")
    a("s_branch .K2_DD")
    a.label(".K2_DW")
    a(f"s_mov_b32 m0, s{sT+7}")
    a(f"buffer_load_dwordx4 v{L16}, {WSR}, s{sT+6} offen lds")
    a.label(".K2_DD")
    a(f"s_add_u32 m0, s{sT+4}, {L_HT}")
    a(f"buffer_load_dwordx4 v165, s[{R_H}:{R_H+3}], s{sT+3} offen lds")
    ts(a, 'dma')
    zero_rec(a, T8, 166)
    ts(a, 'zr')
    a(f"buffer_load_dwordx4 v[{PA}:{PA+3}], v{T16}, {WSR}, s{sT+2} offen")
    def wf(k): a(f"buffer_load_dwordx4 v[{WF+4*k}:{WF+4*k+3}], v{L16}, {WSR}, s{sT+8} offen offset:{1024*k}")
    srd(a, R_BT, sWS, sWS+1, 4096 + 2560000)
    srd(a, R_OUT, sOUT, sOUT+1, 2620000)
    a(f"s_mov_b32 s{sG}, s{sW}")
    LA = 180
    lane_addrs(a, LA)
    group_addrs(a, LA)
    wf(0)
    a(f"s_mul_i32 s{sRING}, s{sW}, {RINGW}")
    a(f"s_add_u32 s{sRING}, s{sRING}, {L_RING}")
    a(f"s_add_u32 s{sRINGB}, s{sRING}, {RINGH}")
    a(f"v_and_b32 v166, 3, v{LANE}")
    a(f"v_bfe_u32 v167, v{LANE}, 2, 3")
    a(f"v_lshrrev_b32 v168, 5, v{LANE}")
    a(f"v_mul_u32_u24 v{aB}, 1056, v166")
    a(f"v_lshl_add_u32 v{aB}, v167, 7, v{aB}")
    a(f"v_lshl_add_u32 v167, v168, 4, s{sRING}")
    a(f"v_add_u32 v{aB}, v{aB}, v167")
    a(f"v_and_b32 v{cof}, 7, v{LANE}")
    a(f"v_lshlrev_b32 v{cof}, 4, v{cof}")
    for k in range(4): a(f"s_movk_i32 s{sDMA+k}, {4096-1056*k}")
    for k in range(4): a(f"s_movk_i32 s{sDMB+k}, {4096+128-1056*k}")
    a(f"v_lshlrev_b32 v167, 8, v{N}")
    a(f"v_lshl_add_u32 v{vOUT}, v{Q}, 3, v167")
    wf(1)
    ts(a, 'wf1')
    a(f"s_mov_b32 s{sPF}, {WS_POSF}")
    a(f"s_movk_i32 s{sK128}, 128")
    a(f"s_mov_b32 s{sL2E}, {NLOG2E}")
    a(f"s_mov_b32 s{sL2E+1}, {NLOG2E}")
    a(f"s_mov_b32 s{sLAST}, 1")
    ONEBF, ONEI = 185, 186
    a(f"v_and_b32 v169, 31, v{LANE}")
    a("v_and_b32 v170, 1, v169")
    a("v_lshlrev_b32 v170, 4, v170")
    a(f"v_mov_b32 v{ONEBF}, 0x3f80")
    a(f"v_lshlrev_b32 v170, v170, v{ONEBF}")
    a("v_lshlrev_b32 v171, 3, v168")
    a("v_sub_u32 v169, v169, v171")
    a("v_lshrrev_b32 v169, 1, v169")
    for m in range(4):
        a(f"v_cmp_eq_u32 vcc, {m}, v169")
        a(f"v_cmp_eq_u32 s[{sT}:{sT+1}], {8+m}, v169")
        a(f"v_cndmask_b32 v{SEL0+m}, 0, v170, vcc")
        a(f"v_cndmask_b32 v{SEL1+m}, 0, v170, s[{sT}:{sT+1}]")
        if m == 1: wf(2)
    for m in range(4): a(f"v_mov_b32 v{ONE+m}, 0x3e803e80")
    BA, HA = 172, 176
    a(f"v_xor_b32 v169, v{Q}, v{N}")
    a("v_lshlrev_b32 v169, 4, v169")
    a(f"s_mov_b32 s{sT}, {L_HT}")
    a(f"v_add3_u32 v{HA}, v169, v167, s{sT}")
    for ks in range(1, 4): a(f"v_xor_b32 v{HA+ks}, {64*ks}, v{HA}")
    wf(3)
    ts(a, 'wf3')
    if TOUCH:
        a(f"s_lshr_b32 s{sT}, s{sB}, 3")
        a(f"s_mul_i32 s{sT}, s{sT}, {640*128}")
        a(f"s_mul_i32 s{sT+1}, s{sW}, {80*128}")
        a(f"s_add_u32 s{sT}, s{sT}, s{sT+1}")
        a(f"s_add_u32 s{sT}, s{sT}, 4096")
        a(f"v_lshlrev_b32 v169, 7, v{LANE}")
        if TOUCH < 64: a(f"s_mov_b64 exec, {(1 << TOUCH) - 1}") if TOUCH <= 31 else a(f"s_mov_b32 exec_hi, {(1 << (TOUCH-32)) - 1}")
        a(f"buffer_load_dword v187, v169, s[{R_BT}:{R_BT+3}], s{sT} offen")
        if TOUCH < 64: a("s_mov_b64 exec, -1")
    a(f"v_and_b32 v169, 1, v{Q}")
    a("v_lshlrev_b32 v169, 5, v169")
    a("v_lshl_add_u32 v169, v166, 3, v169")
    a(f"v_bfe_u32 v170, v{LANE}, 2, 2")
    a("v_lshl_add_u32 v171, v168, 2, v170")
    a(f"v_lshl_add_u32 v169, v170, 8, v169")
    a(f"s_mul_i32 s{sT+2}, s{sG}, {5*TS}")
    a(f"s_add_u32 s{sT+3}, s{sT+2}, {L_AT + 2*TS}")
    a(f"s_add_u32 s{sT+2}, s{sT+2}, {L_AT - 2*TS}")
    a(f"v_mov_b32 v{vZ}, {L_ZERO}")
    a("v_cmp_gt_u32 vcc, 4, v171")
    a(f"v_cmp_eq_u32 s[{sT}:{sT+1}], 7, v171")
    a(f"v_mov_b32 v168, {L_WSM}")
    a(f"v_mov_b32 v167, {L_WSM + 1024}")
    a(f"v_mov_b32 v170, s{sT+3}")
    a(f"v_cndmask_b32 v{BA}, v170, v168, vcc")
    a(f"v_cndmask_b32 v{BA}, v{BA}, v167, s[{sT}:{sT+1}]")
    a(f"v_cmp_gt_u32 s[{sT}:{sT+1}], 2, v171")
    a(f"v_mov_b32 v170, s{sT+2}")
    a(f"v_cndmask_b32 v{BA+1}, v170, v167, s[{sT}:{sT+1}]")
    a(f"v_add_u32 v{BA}, v{BA}, v169")
    a(f"v_add_u32 v{BA+1}, v{BA+1}, v169")
    a(f"v_cndmask_b32 v{BA+1}, v{vZ}, v{BA+1}, vcc")
    a(f"v_mov_b32 v{ONEI}, 1")
    a(f"v_mov_b32 v{BA+2}, 0")
    a(f"s_lshl_b32 s{sT}, s{sG}, 2")
    a(f"v_mov_b32 v{BA+3}, s{sT}")
    a(f"s_mov_b32 s{sT+8}, 0x80808080")
    a(f"s_mov_b32 s{sT+9}, 0x80808080")
    ts(a, 'prek')
    a(f"s_waitcnt vmcnt({8+NT})")
    ts(a, 3)
    a(f"v_cmp_ne_u32 s[{sCM}:{sCM+1}], -1, v{KA}")
    a(f"v_cmp_ne_u32 s[{sCM+2}:{sCM+3}], -1, v{KA+1}")
    a(f"v_lshrrev_b32 v166, 22, v{KB}")
    a(f"v_lshrrev_b32 v167, 22, v{KB+1}")
    cand_atomic(a, A0, KA, sCM, ONEI)
    cand_atomic(a, A1, KA+1, sCM+2, ONEI)
    a(f"v_cmp_ne_u32 vcc, -1, v{KB+1}")
    a(f"v_cmp_eq_u32 s[{sCM+4}:{sCM+5}], s{sB}, v166")
    a(f"v_cmp_eq_u32 s[{sCM+6}:{sCM+7}], s{sB}, v167")
    cand_loads(a, A0, KA, 166)
    cand_loads(a, A1, KA+1, 168)
    a(f"s_and_b64 vcc, vcc, s[{sT+8}:{sT+9}]")
    a(f"s_or_b64 s[{sT}:{sT+1}], s[{sCM+4}:{sCM+5}], s[{sCM+6}:{sCM+7}]")
    a(f"s_or_b64 s[{sT}:{sT+1}], s[{sT}:{sT+1}], vcc")
    a("s_cbranch_scc0 .K2_NOB")
    a("s_cbranch_vccz .K2_NOC")
    a(f"buffer_load_dwordx2 v[{KC}:{KC+1}], v{T8}, {WSR}, s{sBATCH} offen")
    a("v_mov_b32 v168, 0x10000")
    a("s_waitcnt vmcnt(0)")
    a(f"v_lshrrev_b32 v166, 22, v{KC}")
    a(f"v_lshrrev_b32 v167, 22, v{KC+1}")
    a(f"v_cmp_eq_u32 vcc, -2, v{KC+1}")
    a(f"v_cmp_eq_u32 s[{sT}:{sT+1}], s{sB}, v166")
    a(f"v_cmp_eq_u32 s[{sT+2}:{sT+3}], s{sB}, v167")
    a(f"s_or_b64 vcc, vcc, s[{sT}:{sT+1}]")
    a(f"s_or_b64 exec, vcc, s[{sT+2}:{sT+3}]")
    a(f"ds_add_u32 v{BA+2}, v168 offset:{L_CNT}")
    a("s_mov_b64 exec, -1")
    a.label(".K2_NOC")
    cand_atomic(a, B0, KB, sCM+4, ONEI)
    cand_atomic(a, B1, KB+1, sCM+6, ONEI)
    a(f"buffer_load_dwordx4 v[{PB}:{PB+3}], v{T16}, {WSR}, s{sOVE} offen")
    for k, c in enumerate((B0, B1)): cand_loads(a, c, KB+k, 166+2*k)
    a("s_waitcnt lgkmcnt(0)")
    cand_commit(a, B0, sCM+4, 166)
    cand_commit(a, B1, sCM+6, 167)
    a.label(".K2_NOB")
    a("s_waitcnt lgkmcnt(0)")
    cand_commit(a, A0, sCM, 166)
    cand_commit(a, A1, sCM+2, 167)
    ts(a, 'com')
    a(f"s_waitcnt vmcnt({7+NT}) lgkmcnt(0)")
    a("s_barrier")
    ts(a, 4)
    a(f"ds_read_b128 v[{VO}:{VO+3}], v{aSRC}")
    a(f"ds_read_b32 v{BA+3}, v{BA+3} offset:{L_CNT}")
    a(f"ds_read_b128 v[{X}:{X+3}], v{BA+2} offset:{L_CNT}")
    a(f"ds_read_b128 v[{S+4}:{S+7}], v{BA+2} offset:{L_CNT+16}")
    cand_pd(a, A1)
    cand_pd(a, A0)
    for u in range(4):
        for hh in range(2):
            b = BX + 4 * u + 2 * hh
            a(f"ds_read_b64_tr_b16 v[{b}:{b+1}], v{BA+hh} offset:{64*u}")
    a("s_waitcnt lgkmcnt(13)")
    vo_add(a)
    gather(a, 0)
    ts(a, 5)
    a("s_waitcnt lgkmcnt(10)")
    a(f"v_max3_u32 v{X}, v{X}, v{X+1}, v{X+2}")
    a(f"v_max3_u32 v{S+4}, v{S+4}, v{S+5}, v{S+6}")
    a(f"v_readfirstlane_b32 s{sCNT}, v{BA+3}")
    a(f"v_max3_u32 v{X}, v{X}, v{X+3}, v{S+7}")
    a(f"v_max_u32 v{X}, v{X}, v{S+4}")
    a(f"s_min_u32 s{sCNT}, s{sCNT}, 128")
    a(f"v_readfirstlane_b32 s{sOVER}, v{X}")
    a("s_waitcnt lgkmcnt(3)")
    for i in range(12):
        rb, ks = divmod(i, 4)
        a(f"ds_read_b128 v[{HF+4*i}:{HF+4*i+3}], v{HA+ks} offset:{4096*rb}")
    a(f"s_cmp_gt_u32 s{sOVER}, 128")
    a(f"s_cselect_b32 s{sSLOW}, 1, 0")
    a("s_waitcnt vmcnt(4)")
    a("s_cbranch_scc1 .K2_NOBUILD", nosettle=True)
    ts(a, 6)
    cand_build(a, A1, sCM+2, ONEBF)
    cand_build(a, A0, sCM, ONEBF)
    a(f"s_or_b64 s[{sT}:{sT+1}], s[{sCM+4}:{sCM+5}], s[{sCM+6}:{sCM+7}]")
    a("s_cbranch_scc0 .K2_NOBUILD", nosettle=True)
    cand_pd(a, B1)
    cand_pd(a, B0)
    a("s_waitcnt lgkmcnt(0)")
    cand_build(a, B1, sCM+6, ONEBF)
    cand_build(a, B0, sCM+4, ONEBF)
    a.label(".K2_NOBUILD")
    gather(a, 1)
    a(f"v_lshlrev_b32 v{S}, 4, v{LANE}")
    a("s_waitcnt lgkmcnt(0)")
    a("s_barrier")
    ts(a, 7)
    T3 = T + 48
    a(f"ds_read_b128 v[{T3}:{T3+3}], v{vZ}")
    for k in range(4): a(f"buffer_load_dwordx4 v[{WH2+4*k}:{WH2+4*k+3}], v{S}, {WSR}, s{sREM} offen offset:{1024*k}")
    rdS(a)
    for i in range(12):
        rb, ks = divmod(i, 4)
        mfma16(a, H1+4*rb, WF+4*ks, HF+4*i, None if ks == 0 else H1+4*rb)
    a("s_waitcnt lgkmcnt(4)")
    for u in range(4): mfma32(a, ACC+16*u, T3, ONE, None)
    for j in range(6): a(f"v_pk_mul_f32 v[{H1+2*j}:{H1+2*j+1}], v[{H1+2*j}:{H1+2*j+1}], s[{sL2E}:{sL2E+1}]")
    a(f"s_cmp_lg_u32 s{sSLOW}, 0")
    a("s_cbranch_scc1 .K2_SLOW")

    a.label(".K2_MAIN")
    a(f"s_cmp_eq_u32 s{sCNT}, 0")
    a("s_cbranch_scc1 .K2_EMPTY")
    a(f"s_mov_b32 s{sREM}, s{sCNT}")
    rdX(a, 0)
    a(f"ds_read_b128 v[{T3}:{T3+3}], v{vZ}")
    a(f"ds_read_b128 v[{T3+4}:{T3+7}], v{vZ}")
    a(f"ds_read_b128 v[{VO}:{VO+3}], v{aSRC} offset:128")
    a("s_waitcnt vmcnt(8)")
    ts(a, 8)
    rdBF(a, 0, 0)
    rdBF(a, 1, 1)
    h0 = heads(a, 0, 0); h1 = heads(a, 1, 1)
    a("s_waitcnt lgkmcnt(4)")
    h0[0](); h1[0]()
    vo_add(a)
    a("s_waitcnt lgkmcnt(2)")
    h0[1](); h0[2]()
    a("s_waitcnt vmcnt(4) lgkmcnt(0)")
    h1[1](); h1[2]()
    rdBF(a, 2, 0)
    a(f"s_cmp_le_u32 s{sREM}, 32")
    a("s_cbranch_scc1 .K2_NOG1", nosettle=True)
    sn = a.cond_begin()
    gather(a, 0)
    a.label(".K2_NOG1")
    a.cond_end(sn)
    for r in range(16): a(f"v_exp_f32 v{E+r}, v{T+r}")
    mfma32(a, E, ONE, ONE, E)
    a.settle()
    a.label(".K2_LOOP")
    a(f"s_cmp_le_u32 s{sREM}, 32")
    a("s_cbranch_scc1 .K2_LASTT", nosettle=True)
    W = lambda s: (lambda: a(s))
    stage(a, 0, 4, 4, 2, True,
          ev1=[(6, lambda: rdBF(a, 3, 1)), (8, lambda: rdS(a))],
          ev2=[(0, W("s_waitcnt lgkmcnt(6)")), (12, W("s_waitcnt lgkmcnt(4)")), (12, lambda: gather(a, 1))])
    stage(a, 1, 4, 4, 2, True,
          ev1=[(6, W("s_waitcnt vmcnt(4)")), (6, lambda: rdBF(a, 0, 0))],
          ev2=[(3, lambda: rdX(a, RT))], pre="s_waitcnt lgkmcnt(0)")
    a(f"v_add_u32 v{aX}, {RT}, v{aX}")
    a(f"v_add_u32 v{aSRC}, 128, v{aSRC}")
    a(f"s_sub_u32 s{sREM}, s{sREM}, 32")
    def g2():
        a("s_waitcnt lgkmcnt(0)")
        a(f"s_cmp_le_u32 s{sREM}, 32")
        a("s_cbranch_scc1 .K2_NOG2", nosettle=True)
        sn = a.cond_begin()
        vo_add(a)
        gather(a, 0)
        a.label(".K2_NOG2")
        a.cond_end(sn)
    stage(a, 2, 4, 4, 2, True,
          ev1=[(6, lambda: rdBF(a, 1, 1)), (8, W(f"ds_read_b128 v[{VO}:{VO+3}], v{aSRC} offset:128"))],
          ev2=[(0, W("s_waitcnt lgkmcnt(3)")), (12, g2)])
    def w3():
        a("s_waitcnt vmcnt(4)")
        a("s_cbranch_scc0 .K2_W3", nosettle=True)
        sn = a.cond_begin()
        a("s_waitcnt vmcnt(0)")
        a.label(".K2_W3")
        a.cond_end(sn)
        rdBF(a, 2, 0)
    stage(a, 3, 4, 4, 2, True, ev1=[(6, w3)])
    a(f"v_add_u32 v{aS}, {RT}, v{aS}")
    a("s_branch .K2_LOOP", nosettle=True)
    a.label(".K2_LASTT")
    a(f"s_cmp_gt_u32 s{sREM}, 24")
    a("s_cbranch_scc1 .K2_Q4", nosettle=True)
    a(f"s_cmp_gt_u32 s{sREM}, 16")
    a("s_cbranch_scc1 .K2_Q3", nosettle=True)
    a(f"s_cmp_gt_u32 s{sREM}, 8")
    a("s_cbranch_scc1 .K2_Q2", nosettle=True)
    WXR = [BF, BF+4, BF+8, BF+12, SEL0, SEL1, BX+8, BX+12]
    def issue_final():
        a(f"s_mul_i32 s{sT}, s{sB}, 10240")
        a(f"s_lshl_b32 s{sT+1}, s{sW}, 5")
        a(f"s_add_u32 s{sT+4}, s{sT}, s{sT+1}")
        a(f"s_add_u32 s{sT+5}, s{sT+4}, 4096")
        a(f"s_add_u32 s{sT+6}, s{sT+4}, 8192")
        for rb in range(3):
            a(f"buffer_load_dwordx2 v[{BX+2*rb}:{BX+2*rb+1}], v{vOUT}, s[{R_H}:{R_H+3}], s{sT+4+rb} offen")
        a(f"s_mul_i32 s{sT}, s{sG}, 80")
        a(f"v_lshl_add_u32 v{aX}, v{LANE}, 2, s{sT}")
        a(f"ds_read_b32 v{BX+6}, v{aX} offset:{L_POS-4}")
        a(f"v_and_b32 v{aSRC}, 32, v{LANE}")
        a(f"v_add_u32 v{aSRC}, {L_WXK}, v{aSRC}")
        for k in range(8): a(f"ds_read_b128 v[{WXR[k]}:{WXR[k]+3}], v{aSRC} offset:{64*(k>>1)+16*(k&1)}")
    for nq in (1, 2, 3, 4):
        a.label(f".K2_Q{nq}")
        a.ev = []
        a.nop(2)
        ns = 2 if nq > 2 else 1
        stage(a, 0, nq, nq, 2, True,
              ev1=[(6, lambda: rdBF(a, 3, 1)), (8, lambda: rdS(a))],
              ev2=[(0, W("s_waitcnt lgkmcnt(6)"))])
        stage(a, 1, nq, nq, ns, True, pre="s_waitcnt lgkmcnt(0)")
        def fin_issue():
            a(f"s_cmp_eq_u32 s{sLAST}, 0")
            a(f"s_cbranch_scc1 .K2_NF{nq}", nosettle=True)
            sn = a.cond_begin()
            issue_final()
            a.label(f".K2_NF{nq}")
            a.cond_end(sn)
        stage(a, 2, nq, nq, ns, False, ev2=[(0, fin_issue)])
        stage(a, 3, 0, nq, ns, False)
        mfma32(a, ACC+48, T3, S, ACC+48)
        if ns > 1: mfma32(a, ACC+48, T3+4, S+4, ACC+48)
        a("s_branch .K2_DONE", nosettle=True)
    a.label(".K2_EMPTY")
    a(f"s_cmp_eq_u32 s{sLAST}, 0")
    a("s_cbranch_scc1 .K2_SLOW_NEXT")
    issue_final()
    a.label(".K2_DONE")
    a(f"s_cmp_eq_u32 s{sLAST}, 0")
    a("s_cbranch_scc1 .K2_SLOW_NEXT", nosettle=True)

    ts(a, 9)
    PK = T
    a(f"v_bfe_u32 v{X}, v{LANE}, 2, 3")
    a(f"v_and_b32 v{X+1}, 32, v{LANE}")
    a(f"s_mul_i32 s{sT}, s{sG}, {5*MS}")
    a(f"s_add_u32 s{sT}, s{sT}, {L_HT}")
    a(f"v_mul_u32_u24 v{X}, {MS}, v{X}")
    a(f"s_mov_b32 s{sT+2}, 0x11111")
    a(f"s_mov_b32 s{sT+3}, 0x11111")
    a(f"v_add3_u32 v{X}, v{X}, v{X+1}, s{sT}")
    for k in range(8):
        for j in range(4 * k, 4 * k + 4): a(f"v_cvt_pk_bf16_f32 v{PK+j}, v{ACC+2*j}, v{ACC+2*j+1}")
        if k & 1:
            a(f"s_mov_b64 exec, s[{sT+2}:{sT+3}]")
            for kk in (k - 1, k): a(f"ds_write_b128 v{X}, v[{PK+4*kk}:{PK+4*kk+3}] offset:{64*(kk>>1)+16*(kk&1)}")
            a("s_mov_b64 exec, -1")
    a(f"v_and_b32 v{X+1}, 15, v{LANE}")
    a(f"v_and_b32 v{X+2}, 48, v{LANE}")
    a(f"v_mul_u32_u24 v{X+1}, {MS}, v{X+1}")
    a(f"s_mov_b32 s{sT}, {L_HT}")
    a(f"v_add3_u32 v{X+1}, v{X+1}, v{X+2}, s{sT}")
    a("s_waitcnt lgkmcnt(0)")
    a("s_barrier")
    ts(a, 10)
    MF = ACC + 16
    for i in range(12):
        rb, ks = divmod(i, 4)
        a(f"ds_read_b128 v[{MF+4*i}:{MF+4*i+3}], v{X+1} offset:{16*MS*rb+64*ks}")
    PD_ = E
    for k in range(4):
        mfma32(a, PD_, WXR[k], PK+4*k, None if k == 0 else PD_)
        mfma32(a, PD_+16, WXR[4+k], PK+16+4*k, None if k == 0 else PD_+16)
    RES = T + 32
    a("s_waitcnt vmcnt(0)")
    for j in range(6):
        a(f"v_lshlrev_b32 v{RES+2*j}, 16, v{BX+j}")
        a(f"v_and_b32 v{RES+2*j+1}, 0xffff0000, v{BX+j}")
    for i in range(12):
        rb, ks = divmod(i, 4)
        a(f"s_waitcnt lgkmcnt({11-i})")
        mfma16(a, H1+4*rb, WH2+4*ks, MF+4*i, H1+4*rb)
    a(f"s_mov_b32 s{sT+7}, {NLN2}")
    a(f"v_lshrrev_b32 v{X+2}, 2, v{LANE}")
    a(f"v_sub_u32 v{X+2}, v{LANE}, v{X+2}")
    a(f"v_lshlrev_b32 v{X+2}, 1, v{X+2}")
    a(f"s_mul_i32 s{sT}, s{sG}, 30")
    a(f"s_mul_i32 s{sT+1}, s{sB}, 240")
    a(f"s_add_u32 s{sT}, s{sT}, s{sT+1}")
    a(f"s_add_u32 s{sT}, s{sT}, {2560000-2}")
    a(f"v_add_f32 v{PD_}, v{PD_}, v{PD_+16}")
    a(f"s_mov_b32 s{sT+2}, 0x00ff00ff")
    a(f"s_mov_b32 s{sT+3}, 0x00ff00ff")
    a(f"v_fma_f32 v{PD_}, v{PD_}, s{sT+7}, v{BX+6}")
    a(f"v_cvt_pk_bf16_f32 v{PD_}, v{PD_}, v{PD_}")
    a("s_mov_b64 exec, 0xeeeee")
    a(f"buffer_store_short v{PD_}, v{X+2}, s[{R_OUT}:{R_OUT+3}], s{sT} offen{OST}")
    a("s_mov_b64 exec, -1")
    for rb in range(3):
        o = 4 * rb
        for r in range(4): a(f"v_exp_f32 v{o+r}, v{H1+o+r}")
        for j in range(2): a(f"v_pk_add_f32 v[{o+2*j}:{o+2*j+1}], v[{o+2*j}:{o+2*j+1}], 1.0 op_sel_hi:[1,0]")
        for r in range(4): a(f"v_rcp_f32 v{o+r}, v{o+r}")
        for j in range(2): a(f"v_pk_mul_f32 v[{o+2*j}:{o+2*j+1}], v[{o+2*j}:{o+2*j+1}], v[{H1+o+2*j}:{H1+o+2*j+1}]")
        for r in range(4): a(f"v_fma_f32 v{o+r}, v{o+r}, s{sT+7}, v{RES+o+r}")
        a(f"v_cvt_pk_bf16_f32 v{o}, v{o}, v{o+1}")
        a(f"v_cvt_pk_bf16_f32 v{o+1}, v{o+2}, v{o+3}")
        if rb == 2: a(f"s_mov_b64 exec, s[{sT+2}:{sT+3}]")
        a(f"buffer_store_dwordx2 v[{o}:{o+1}], v{vOUT}, s[{R_OUT}:{R_OUT+3}], s{sT+4+rb} offen{OST}")
    if PROF: a("s_mov_b64 exec, -1")
    ts_store(a)
    a("s_endpgm")

    C = 128
    CC = Cand(C, 0)
    a.label(".K2_SLOW")
    srd(a, R_A, sDST, sDST+1, 640000)
    srd(a, R_B, sSRC, sSRC+1, 640000)
    srd(a, R_C, sEA, sEA+1, 1280000)
    a(f"s_mov_b32 s{sLAST}, 0")
    a(f"s_mov_b32 s{sBATCH}, 0")
    a(f"s_mov_b64 s[{sPEND}:{sPEND+1}], -1")
    a("s_waitcnt vmcnt(0) lgkmcnt(0)")
    a("s_barrier")
    a.label(".K2_SLOW_ZERO")
    a(f"s_lshl_b32 s{sT}, s{sW}, 9")
    a(f"v_lshl_add_u32 v80, v{LANE}, 3, s{sT}")
    init_small(a, 80, 64)
    zero_rec(a, 80, 68)
    lane_addrs(a, 74)
    group_addrs(a, 74)
    a("s_waitcnt lgkmcnt(0)")
    a("s_barrier")
    a.label(".K2_SLOW_BATCH")
    a(f"s_lshl_b32 s{sT}, s{sW}, 6")
    a(f"s_add_u32 s{sT}, s{sT}, s{sBATCH}")
    a(f"v_add_u32 v80, s{sT}, v{LANE}")
    a("v_lshlrev_b32 v81, 2, v80")
    a("v_lshlrev_b32 v82, 3, v80")
    a(f"buffer_load_dword v83, v81, s[{R_A}:{R_A+3}], 0 offen")
    a(f"buffer_load_dword v84, v81, s[{R_B}:{R_B+3}], 0 offen")
    a(f"buffer_load_dwordx2 v[{C}:{C+1}], v82, s[{R_C}:{R_C+3}], 0 offen")
    a(f"s_mov_b32 s{sT+1}, 160000")
    a(f"v_cmp_gt_u32 s[{sCM}:{sCM+1}], s{sT+1}, v80")
    a("v_mov_b32 v88, 1")
    a("v_mov_b32 v89, 0x3f80")
    a("v_mov_b32 v90, 0")
    a(f"s_lshl_b32 s{sT}, s{sG}, 2")
    a(f"v_mov_b32 v72, s{sT}")
    a("s_waitcnt vmcnt(0)")
    a("v_mul_u32_u24 v85, 13108, v83")
    a("v_lshrrev_b32 v85, 16, v85")
    a("v_mad_i32_i24 v86, v85, -5, v83")
    a("v_lshlrev_b32 v87, 2, v85")
    a("v_and_b32 v87, 0x1c, v87")
    a("v_lshl_or_b32 v86, v86, 5, v87")
    a("v_lshl_or_b32 v91, v84, 8, v86")
    a("v_lshrrev_b32 v85, 3, v85")
    a(f"v_cmp_eq_u32 vcc, s{sB}, v85")
    a(f"s_and_b64 s[{sCM}:{sCM+1}], s[{sCM}:{sCM+1}], s[{sPEND}:{sPEND+1}]")
    a(f"s_and_b64 s[{sCM}:{sCM+1}], s[{sCM}:{sCM+1}], vcc")
    a(f"s_mov_b64 s[{sPEND}:{sPEND+1}], s[{sCM}:{sCM+1}]")
    cand_atomic(a, CC, 91, sCM, 88)
    cand_loads(a, CC, 91, 92)
    cand_pd(a, CC)
    a("s_waitcnt lgkmcnt(0)")
    cand_commit(a, CC, sCM, 92)
    a(f"s_andn2_b64 s[{sPEND}:{sPEND+1}], s[{sPEND}:{sPEND+1}], s[{sCM}:{sCM+1}]")
    a("s_waitcnt vmcnt(0)")
    cand_build(a, CC, sCM, 89)
    a("s_waitcnt lgkmcnt(0)")
    a("s_barrier")
    a(f"ds_read_b128 v[64:67], v90 offset:{L_CNT}")
    a(f"ds_read_b128 v[68:71], v90 offset:{L_CNT+16}")
    a(f"ds_read_b32 v72, v72 offset:{L_CNT}")
    a(f"ds_read_b128 v[{VO}:{VO+3}], v{aSRC}")
    a("s_waitcnt lgkmcnt(0)")
    a("v_max3_u32 v64, v64, v65, v66")
    a("v_max3_u32 v68, v68, v69, v70")
    a(f"v_readfirstlane_b32 s{sCNT}, v72")
    a("v_max3_u32 v64, v64, v67, v71")
    a("v_max_u32 v64, v64, v68")
    a(f"s_min_u32 s{sCNT}, s{sCNT}, 128")
    a(f"v_readfirstlane_b32 s{sOVER}, v64")
    a("s_barrier")
    a(f"s_cmp_eq_u32 s{sOVER}, 0")
    a("s_cbranch_scc1 .K2_SLOW_ADV")
    a(f"s_cmp_eq_u32 s{sCNT}, 0")
    a("s_cbranch_scc1 .K2_SLOW_NEXT")
    vo_add(a)
    gather(a, 0)
    gather(a, 1)
    a("s_waitcnt vmcnt(0)")
    a("s_branch .K2_MAIN")
    a.label(".K2_SLOW_NEXT")
    a("s_waitcnt vmcnt(0) lgkmcnt(0)")
    a("s_barrier")
    a(f"s_cmp_gt_u32 s{sOVER}, 128")
    a("s_cbranch_scc1 .K2_SLOW_ZERO")
    a(f"s_add_u32 s{sBATCH}, s{sBATCH}, 512")
    a(f"s_mov_b64 s[{sPEND}:{sPEND+1}], -1")
    a(f"s_cmp_lt_u32 s{sBATCH}, 160000")
    a("s_cbranch_scc1 .K2_SLOW_ZERO")
    a("s_branch .K2_SLOW_FIN")
    a.label(".K2_SLOW_ADV")
    a(f"s_add_u32 s{sBATCH}, s{sBATCH}, 512")
    a(f"s_mov_b64 s[{sPEND}:{sPEND+1}], -1")
    a(f"s_cmp_lt_u32 s{sBATCH}, 160000")
    a("s_cbranch_scc1 .K2_SLOW_BATCH")
    a.label(".K2_SLOW_FIN")
    a(f"s_mov_b32 s{sLAST}, 1")
    a(f"s_mov_b32 s{sCNT}, 0")
    a("s_branch .K2_MAIN")
```

```python
import sys
sys.path.insert(0, 'gen')
from asmfw import *
import k1c as k1, k2d as k2
HDR = open('standalone__cheap_equivariant_egnn__graph.s.ref').read().split('; Override launch')[0]
def kernel_text(name, fn):
    a = Asm(); fn(a)
    t = f".globl {name}\n.p2align 8\n.type {name},@function\n{name}:\n" + a.text()
    return t, a.maxv, a.maxs
def build(path, **kw):
    t1, v1, s1 = kernel_text("egnn_prep_kernel", lambda a: k1.gen_k1(a, kw.get('ST', ''), kw.get('prof', False)))
    hdr = HDR + f"; @launch kernel=egnn_prep_kernel grid=({k1.K1_GRID},1,1) block=(512,1,1) lds={k1.K1_LDS}\n"
    body = t1; desc = kdesc("egnn_prep_kernel", v1, s1)
    t2, v2, s2 = kernel_text("egnn_main_kernel", lambda a: k2.gen_k2(a, **kw))
    hdr += f"; @launch kernel=egnn_main_kernel grid=({k2.K2_GRID},1,1) block=({k2.K2_BLOCK},1,1) lds={k2.K2_LDS}\n"
    body += t2; desc += kdesc("egnn_main_kernel", v2, s2)
    print("k1 vgprs", v1, "sgprs", s1, "k2 vgprs", v2, "sgprs", s2, file=sys.stderr)
    out = hdr + '.amdgcn_target "amdgcn-amd-amdhsa--gfx950"\n.text\n' + body + '.section .rodata,"a"\n' + desc
    open(path, 'w').write(out)
if __name__ == "__main__":
    kw = {}
    for x in sys.argv[2:]:
        if '=' in x:
            k, v = x.split('=', 1)
            kw[k] = {'0': False, '1': True}.get(v, v)
        else: kw[x] = True
    if 'ST' in kw: kw['ST'] = ' ' + kw['ST'].replace('+', ' ')
    if 'OST' in kw: kw['OST'] = ' ' + kw['OST'].replace('+', ' ')
    build(sys.argv[1], **kw)
```
